```python
import torch

def _softmax(x, axis=-1):
    return torch.softmax(x, dim=axis)
def _gelu(x):
    return torch.nn.functional.gelu(x, approximate="tanh")
def _silu(x):
    return torch.nn.functional.silu(x)
def _sigmoid(x):
    return torch.sigmoid(x)
def _layernorm(x, axis=-1, eps=1e-5):
    m = x.mean(dim=axis, keepdim=True)
    v = x.var(dim=axis, keepdim=True, unbiased=False)
    return (x - m) / torch.sqrt(v + eps)
def _scatter_add(tgt, idx, src, axis=0):
    return tgt.clone().index_add_(axis, idx, src)
def _segment_sum(src, seg, n):
    out = torch.zeros((n,) + src.shape[1:], dtype=src.dtype)
    return out.index_add_(0, seg, src)
def _pad(x, pw):
    flat = tuple(v for pair in reversed(pw) for v in pair)
    return torch.nn.functional.pad(x, flat)

kernel_name = 'parallel_sum__softmax_full_mha__glu_gated_reglu__prompt'

def setup_inputs():

    _w = (lambda a: (lambda t: t.to(torch.bfloat16) if t.is_floating_point() else t)(torch.as_tensor(a)))
    def _A_setup():
        B, S, D = 1, 2048, 448
        return {
            "x": _w((lambda *s: torch.randn(*s, dtype=torch.bfloat16) * 0.05)(B, S, D)),
            "wqkv": _w((lambda *s: torch.randn(*s, dtype=torch.bfloat16) * 0.05)(D, 3 * D)),
            "wo": _w((lambda *s: torch.randn(*s, dtype=torch.bfloat16) * 0.05)(D, D)),
        }
    _A_in = _A_setup()

    def _B_setup():
        B, S, D, F = 1, 2048, 448, 1792
        return {
            "x": _w((lambda *s: torch.randn(*s, dtype=torch.bfloat16) * 0.05)(B, S, D)),
            "W_gate": _w((lambda *s: torch.randn(*s, dtype=torch.bfloat16) * 0.4)(D, F) * (2.0 / D) ** 0.5),
            "W_up": _w((lambda *s: torch.randn(*s, dtype=torch.bfloat16) * 0.4)(D, F) * (2.0 / D) ** 0.5),
            "W_down": _w((lambda *s: torch.randn(*s, dtype=torch.bfloat16) * 0.4)(F, D) * (1.0 / F) ** 0.5),
        }
    _B_in = _B_setup()

    return {
        "A_x": _A_in["x"],
        "A_wqkv": _A_in["wqkv"],
        "A_wo": _A_in["wo"],
        "B_x": _B_in["x"],
        "B_W_gate": _B_in["W_gate"],
        "B_W_up": _B_in["W_up"],
        "B_W_down": _B_in["W_down"],
    }

def reference(A_x, A_wqkv, A_wo, B_x, B_W_gate, B_W_up, B_W_down):
    def _A_ref(x, wqkv, wo):
        B, S, D = x.shape
        H = 16; Dh = D // H
        qkv = (lambda x, *d: x.permute(*d))((x @ wqkv).reshape(B, S, 3, H, Dh), 2, 0, 3, 1, 4)
        q, k, v = qkv[0], qkv[1], qkv[2]
        scale = Dh ** -0.5
        scores = torch.einsum("bhqd,bhkd->bhqk", q, k) * scale
        p = _softmax(scores, axis=-1)
        o = torch.einsum("bhqk,bhkd->bhqd", p, v)
        return (lambda x, *d: x.permute(*d))(o, 0, 2, 1, 3).reshape(B, S, D) @ wo

    def _B_ref(x, W_gate, W_up, W_down):
        gate = torch.einsum("bsd,df->bsf", x, W_gate)
        up = torch.einsum("bsd,df->bsf", x, W_up)
        gate = gate * (lambda x, dt: x.to(dt))(gate > 0, gate.dtype)
        h = gate * up
        return torch.einsum("bsf,fd->bsd", h, W_down)

    x = A_x
    xn = _layernorm(x, axis=-1)
    return x + _A_ref(xn, A_wqkv, A_wo) + _B_ref(xn, B_W_gate, B_W_up, B_W_down)
```

```python
import re

REG_RE = re.compile(r'(?<![\w.])([vsa])(?:(\d+)|\[(\d+):(\d+)\])(?![\w])')

def regs_in(op):
    out = []
    for m in REG_RE.finditer(op):
        k = m.group(1)
        if m.group(2) is not None:
            out.append((k, int(m.group(2))))
        else:
            out += [(k, i) for i in range(int(m.group(3)), int(m.group(4)) + 1)]
    for sp in ('vcc', 'exec', 'm0'):
        if re.search(r'(?<![\w])' + sp + r'(?:_lo|_hi)?(?![\w])', op):
            out.append((sp, 0))
    return out

TRANS = ('v_exp_f32', 'v_log_f32', 'v_rcp_f32', 'v_rsq_f32', 'v_sqrt_f32', 'v_sin_f32', 'v_cos_f32')

class Ins:
    def __init__(self, text, tag=None):
        self.text = text.strip()
        self.tag = tag
        t = self.text.split(';')[0].strip()
        self.label = t.endswith(':')
        self.directive = t.startswith('.')
        self.rd = set(); self.wr = set(); self.kind = 'other'
        self.srcc = set(); self.srcab = set(); self.passes = 0
        self.op = ''
        if self.label or self.directive or not t:
            self.kind = 'meta'
            return
        parts = t.split(None, 1)
        op = parts[0]; self.op = op
        rest = parts[1] if len(parts) > 1 else ''
        ops = [o.strip() for o in rest.split(',')] if rest else []
        R = [regs_in(o) for o in ops]
        flat = lambda L: set(x for l in L for x in l)
        base = re.sub(r'_(e32|e64|sdwa|dpp)$', '', op)
        if op.startswith('v_mfma'):
            self.kind = 'mfma'
            self.wr = set(R[0]); self.srcab = flat(R[1:3]); self.srcc = set(R[3]); self.rd = self.srcab | self.srcc
            self.passes = 8 if '32x32' in op else 4
        elif op.startswith('v_'):
            self.kind = 'trans' if base in TRANS else 'valu'
            if op.startswith('v_permlane') and 'swap' in op:
                self.wr = flat(R[:2]); self.rd = flat(R[:2])
            elif op.startswith('v_cmp'):
                self.wr = set(R[0]); self.rd = flat(R[1:])
            elif base in ('v_add_co_u32', 'v_addc_co_u32', 'v_sub_co_u32'):
                self.wr = flat(R[:2]); self.rd = flat(R[2:])
            else:
                self.wr = set(R[0]); self.rd = flat(R[1:])
                if base in ('v_fmac_f32', 'v_dot2c_f32_bf16', 'v_writelane_b32') or 'dpp' in op or 'row_' in t or 'quad_perm' in t or 'UNUSED_PRESERVE' in t:
                    self.rd |= set(R[0])
            self.dpp = ('row_' in t or 'quad_perm' in t or 'dpp' in op)
        elif op.startswith('ds_'):
            self.kind = 'ds'
            if op.startswith('ds_read') or 'permute' in op or 'swizzle' in op or '_rtn' in op:
                self.wr = set(R[0]); self.rd = flat(R[1:])
            else:
                self.rd = flat(R)
        elif op.startswith('buffer_') or op.startswith('global_'):
            self.kind = 'vmem'
            self.isdma = bool(re.search(r'\blds\b', t))
            if 'load' in op and not self.isdma:
                self.wr = set(R[0]); self.rd = flat(R[1:])
            else:
                self.rd = flat(R)
                if self.isdma: self.rd.add(('m0', 0))
            self.wide_store = ('store' in op and ('x3' in op or 'x4' in op))
            self.sdata = set(R[0]) if ('store' in op and op.startswith('buffer_')) else set()
        elif op.startswith('s_'):
            self.kind = 'salu'
            if op.startswith('s_load') or op in ('s_memtime', 's_memrealtime'):
                self.kind = 'smem'
                self.wr = set(R[0]); self.rd = flat(R[1:])
            elif op in ('s_waitcnt', 's_barrier', 's_nop', 's_endpgm', 's_setprio', 's_sleep') or op.startswith('s_branch') or op.startswith('s_cbranch'):
                self.kind = 'ctl'
                if 'vcc' in op: self.rd.add(('vcc', 0))
            elif op.startswith('s_cmp') or op.startswith('s_bitcmp'):
                self.rd = flat(R)
            else:
                self.wr = set(R[0]); self.rd = flat(R[1:])
                if 'saveexec' in op: self.wr.add(('exec', 0))
        else:
            raise ValueError('unknown op ' + t)

    def states(self):
        if self.kind == 'meta': return 0
        if self.op == 's_nop':
            return int(self.text.split()[1]) + 1
        return 1

class WaitTag:
    def __init__(self, *tags): self.tags = set(tags)
class WaitLgkm0:
    pass
class Sync:
    def __init__(self, vm=True, lgkm=True): self.vm = vm; self.lgkm = lgkm

class Tracker:
    def __init__(self):
        self.vm = []
        self.lg = []
        self.hist = []
        self.out = []
        self.nops = 0
        self.log = []
    def clone_state(self):
        t = Tracker(); t.vm = list(self.vm); t.lg = list(self.lg); t.hist = list(self.hist[-24:]); return t
    def _emit(self, ins):
        self.out.append(ins);
        if ins.kind != 'meta': self.hist.append(ins)
    def _wait(self, vm=None, lg=None):
        parts = []
        if vm is not None:
            vm = min(vm, 63)
            if vm < len(self.vm):
                parts.append(f'vmcnt({vm})'); self.vm = self.vm[len(self.vm) - vm:] if vm else []
        if lg is not None:
            lg = min(lg, 15)
            if lg < len(self.lg):
                parts.append(f'lgkmcnt({lg})'); self.lg = self.lg[len(self.lg) - lg:] if lg else []
        if parts:
            self._emit(Ins('s_waitcnt ' + ' '.join(parts)))
    def need_states(self, c):
        need = 0; dist = 0
        for p in reversed(self.hist):
            if dist >= 20: break
            r = self._pair(p, c)
            if r > dist: need = max(need, r - dist)
            dist += p.states()
        return need
    def _pair(self, p, c):
        V = lambda s: set(x for x in s if x[0] in 'va')
        S = lambda s: set(x for x in s if x[0] == 's' or x[0] == 'vcc')
        r = 0
        isvalu = lambda i: i.kind in ('valu', 'trans')
        if p.kind == 'mfma':
            big = {8: 12, 4: 8}[p.passes]
            if c.kind == 'mfma':
                if p.wr & c.srcab: r = max(r, big)
                if p.wr & c.srcc:
                    if not (p.wr == c.srcc and p.passes == c.passes): r = max(r, big - 2)
            elif isvalu(c) or c.kind in ('ds', 'vmem'):
                if p.wr & (c.rd | c.wr): r = max(r, big)
                if isvalu(c) and (p.srcc & c.wr): r = max(r, {8: 7, 4: 3}[p.passes])
        elif isvalu(p):
            pv = V(p.wr); ps = S(p.wr)
            if c.kind == 'mfma' and (pv & c.rd): r = max(r, 2)
            if isvalu(c):
                if p.kind == 'trans' and c.kind != 'trans' and (pv & c.rd): r = max(r, 1)
                if c.op.startswith('v_permlane') and (pv & c.rd): r = max(r, 2)
                if getattr(c, 'dpp', False) and (pv & c.rd): r = max(r, 2)
                if c.op.startswith('v_readfirstlane') or c.op.startswith('v_readlane'):
                    if pv & c.rd: r = max(r, 1)
                    if ps & c.rd: r = max(r, 4)
                if ps & c.rd: r = max(r, 2)
                if ('sdwa' in p.op or 'op_sel' in p.text) and (pv & (c.rd | c.wr)): r = max(r, 1)
            if c.kind == 'vmem' and (ps & c.rd): r = max(r, 5)
            if c.kind in ('salu', 'ctl') and (ps & c.rd): r = max(r, 3)
        elif p.kind == 'salu':
            if ('m0', 0) in p.wr and c.kind == 'vmem' and c.isdma: r = max(r, 1)
        elif p.kind == 'vmem':
            if p.wide_store and (p.sdata & c.wr): r = max(r, 2)
        return r
    def feed(self, x):
        if isinstance(x, str): x = Ins(x)
        if isinstance(x, WaitTag):
            idx = [i for i, (t, _) in enumerate(self.vm) if t in x.tags]
            if idx: self._wait(vm=len(self.vm) - 1 - max(idx))
            return
        if isinstance(x, WaitLgkm0):
            self._wait(lg=0); return
        if isinstance(x, Sync):
            self._wait(vm=0 if x.vm else None, lg=0 if x.lgkm else None); return
        ins = x
        if ins.kind == 'meta':
            self._emit(ins); return
        if ins.op == 's_waitcnt':
            m = re.search(r'vmcnt\((\d+)\)', ins.text)
            if m:
                n = int(m.group(1)); self.vm = self.vm[len(self.vm) - n:] if n and n < len(self.vm) else ([] if n == 0 else self.vm)
            m = re.search(r'lgkmcnt\((\d+)\)', ins.text)
            if m:
                n = int(m.group(1)); self.lg = self.lg[len(self.lg) - n:] if n and n < len(self.lg) else ([] if n == 0 else self.lg)
            self._emit(ins); return
        touch = ins.rd | ins.wr
        wv = None; wl = None
        idx = [i for i, (_, d) in enumerate(self.vm) if d & touch]
        if idx: wv = len(self.vm) - 1 - max(idx)
        idx = [i for i, d in enumerate(self.lg) if d[1] & touch]
        if idx:
            wl = len(self.lg) - 1 - max(idx)
            if any(d[0] == 'smem' for d in self.lg): wl = 0
        if wv is not None or wl is not None: self._wait(vm=wv, lg=wl)
        n = self.need_states(ins)
        if n > 0:
            self.nops += n
            self.log.append((n, ins.text))
            while n > 0:
                k = min(n, 16)
                self._emit(Ins(f's_nop {k-1}')); n -= k
        self._emit(ins)
        if ins.kind == 'vmem': self.vm.append((ins.tag, set(ins.wr)))
        elif ins.kind == 'ds': self.lg.append(('ds', set(ins.wr)))
        elif ins.kind == 'smem': self.lg.append(('smem', set(ins.wr)))
    def feed_all(self, L):
        for x in L: self.feed(x)
    def text(self):
        o = []
        for i in self.out:
            o.append(i.text if (i.label or i.directive) else '    ' + i.text)
        return '\n'.join(o)

def vr(a, n=1):
    return f'v{a}' if n == 1 else f'v[{a}:{a+n-1}]'
def sr(a, n=1):
    return f's{a}' if n == 1 else f's[{a}:{a+n-1}]'

def interleave(main, filler, counts=None):
    slots = [i for i, x in enumerate(main) if (isinstance(x, str) and x.startswith('v_mfma')) or (isinstance(x, Ins) and x.kind == 'mfma')]
    n = len(slots)
    out = []; fi = 0; k = 0
    for i, x in enumerate(main):
        out.append(x)
        if k < n and i == slots[k]:
            k += 1
            upto = (len(filler) * k + n - 1) // n if counts is None else min(len(filler), sum(counts[:k]))
            out += filler[fi:upto]; fi = max(fi, upto)
    out += filler[fi:]
    return out
```

```python
import sys, math
from asmfw import *

NAME = 'parallel_sum__softmax_full_mha__glu_gated_reglu__prompt'
OPT = dict(stamps=False, fpoint=6)
for a in sys.argv[2:]:
    k, v = a.split('=')
    OPT[k] = int(v)

WS_NONCE = 0
WS_F1 = 4096
WS_F2 = WS_F1 + 32768
WS_STAMP = WS_F2 + 32768
WS_QKV = 1 << 20
WS_O = WS_QKV + 48 * 131072
WS_H = WS_O + 64 * 32768
WS_END = WS_H + 64 * 112 * 1024
TAGK = 0x9E3779B9

LX = 0
LI = [49152, 73728, 98304]
LF0, LF1 = 122880, 139264
LMISC = 155648
LC = LMISC
LSQ = LMISC + 1280
BSLOT = [LF0, LF1, LX + 16384, LX + 32768, LI[0] + 8192, LI[1] + 8192, LI[2] + 8192]
LVT = LX
LSCR = 114688
RING = 28672

SX, SI0, SI1, SI2, SG, SU, SWS, SD, SWO, SOUT = 20, 24, 28, 32, 36, 40, 44, 48, 52, 56
sW, sRB, sCB, sTAG, sXCD, sIDX = 60, 61, 62, 63, 64, 65
sOX, sO0, sO1, sO2, sSTEP, sOB = 66, 67, 68, 69, 70, 71
sW2K, sW1K, sMASK, sP0, sM, sCG = 72, 73, 74, 75, 76, 77
sISY, sISV, sSCALE, sFLA = 78, 79, 80, 81
T0, T1, T2, T3, T4, T5 = 82, 83, 84, 85, 86, 87
sHI = 88
sST = 90
srd = lambda b: sr(b, 4)

ACCA = [0, 16, 32]; ACCB = [48, 64]
WF = [80, 92]
SIDE = [104, 108]; UT = [112, 113, 114, 115]
CACC = [116, 117, 118, 119, 120]; SQ = [121, 122]
RS2 = 123; AW = [124, 125, 126]; AS = 127
XF = 128
VG, VU = 240, 241; ABW = [242, 243]
L16, LANE, TMPV, RSTD = 244, 245, 246, 247
CB_ = 248; CA_ = 252
AX = [48, 49, 50, 51]; VX = [52, 53]; VI = [54, 55, 56]; APATCH = 57; PCONST = 58; ASX = 60; AS2 = 61

MF = 'v_mfma_f32_32x32x16_bf16'
def mfma(d, a, b, c=None):
    cs = '0' if c is None else vr(c, 16)
    return f'{MF} {vr(d,16)}, {vr(a,4)}, {vr(b,4)}, {cs}'

stamp_n = [0]
def stamp(i):
    if not OPT['stamps']: return []
    return [WaitLgkm0(), f's_memtime s[100:101]', 's_waitcnt lgkmcnt(0)', f's_mov_b32 s{sST+i}, s100']
def dump_stamps():
    if not OPT['stamps']: return []
    L = [f's_lshl_b32 s{T0}, s2, 3', f's_add_u32 s{T0}, s{T0}, s{sW}', f's_lshl_b32 s{T0}, s{T0}, 6', f's_add_u32 s{T0}, s{T0}, {WS_STAMP}',
         f's_memrealtime s[{T2}:{T3}]', 's_waitcnt lgkmcnt(0)']
    for i in range(10): L.append(f'v_mov_b32 v{208+i}, s{sST+i}')
    L += [f'v_mov_b32 v218, s{T2}', f'v_mov_b32 v219, s3', 'v_mov_b32 v220, 0',
          f'buffer_store_dwordx4 v[208:211], v220, {srd(SWS)}, s{T0} offen',
          f'buffer_store_dwordx4 v[212:215], v220, {srd(SWS)}, s{T0} offen offset:16',
          f'buffer_store_dwordx4 v[216:219], v220, {srd(SWS)}, s{T0} offen offset:32']
    return L

def dma(vaddr, s, soff, m0base, m0imm, tag):
    return [f's_add_u32 m0, s{m0base}, {m0imm}', Ins(f'buffer_load_dwordx4 v{vaddr}, {srd(s)}, s{soff} offen lds', tag)]

def dma_A(c):
    sl = c % 3; tag = f'A{c}'
    L = []
    L += dma(VX[0], SX, sOX, sW2K, LX + sl * 16384, tag)
    L += dma(VX[1], SX, sOX, sW2K, LX + sl * 16384 + 1024, tag)
    L += dma(VI[0], SI0, sO0, sW1K, LI[0] + sl * 8192, tag)
    L += dma(VI[1], SI1, sO1, sW1K, LI[1] + sl * 8192, tag)
    L += dma(VI[2], SI2, sO2, sW1K, LI[2] + sl * 8192, tag)
    adv = [f's_add_u32 s{sOX}, s{sOX}, 128', f's_add_u32 s{sO0}, s{sO0}, {64*2688}',
           f's_add_u32 s{sO1}, s{sO1}, s{sSTEP}', f's_add_u32 s{sO2}, s{sO2}, s{sSTEP}']
    return L + adv
def dma_B(c):
    tag = f'B{c}'
    return dma(VG, SG, sOB, sW1K, BSLOT[c], tag) + dma(VU, SU, sOB, sW1K, BSLOT[c] + 8192, tag) + [f's_add_u32 s{sOB}, s{sOB}, {64*3584}']

def setup():
    L = []
    e = L.append
    e('s_cmp_ge_u32 s2, 256'); e('s_cbranch_scc1 L_end')
    if OPT['stamps']:
        e(f's_memrealtime s[{T2}:{T3}]'); e(f's_memtime s[100:101]')
    e('s_load_dwordx4 s[4:7], s[0:1], 0')
    e('s_load_dwordx8 s[12:19], s[0:1], 32')
    e('s_load_dwordx2 s[10:11], s[0:1], 72')
    e('s_load_dwordx2 s[8:9], s[0:1], 16')
    e(f'v_lshrrev_b32 v1, 6, v0')
    e(f'v_and_b32 v{LANE}, 63, v0')
    e(f'v_readfirstlane_b32 s{sW}, v1')
    e(f's_and_b32 s{sXCD}, s2, 7'); e(f's_lshr_b32 s{sIDX}, s2, 3')
    e(f's_and_b32 s{T0}, s{sXCD}, 1'); e(f's_lshl_b32 s{T0}, s{T0}, 3'); e(f's_and_b32 s{T1}, s{sIDX}, 7'); e(f's_add_u32 s{sRB}, s{T0}, s{T1}')
    e(f's_lshr_b32 s{T0}, s{sXCD}, 1'); e(f's_lshl_b32 s{T0}, s{T0}, 2'); e(f's_lshr_b32 s{T1}, s{sIDX}, 3'); e(f's_add_u32 s{sCB}, s{T0}, s{T1}')
    tbl = sum(v << (4 * i) for i, v in enumerate([0, 5, 8, 13, 3, 4, 11, 12]))
    e(f's_lshl_b32 s{T0}, s{sCB}, 2'); e(f's_lshr_b32 s{T0}, {tbl:#x}, s{T0}'); e(f's_and_b32 s{T0}, s{T0}, 15')
    e(f's_add_u32 s{T1}, s{sCB}, 8'); e(f's_cmp_ge_u32 s{sCB}, 8'); e(f's_cselect_b32 s{sP0}, s{T1}, s{T0}'); e(f's_cselect_b32 s{sISV}, 1, 0')
    e(f's_add_u32 s{sFLA}, s{sCB}, 12')
    e(f's_lshl_b32 s{sW2K}, s{sW}, 11'); e(f's_lshl_b32 s{sW1K}, s{sW}, 10')
    e(f's_mov_b32 s{sMASK}, 0xffff0000')
    e(f's_lshr_b32 s{sCG}, s{sW}, 2')
    e(f's_and_b32 s{T0}, s{sW}, 3'); e(f's_lshl_b32 s{sM}, s{sRB}, 2'); e(f's_add_u32 s{sM}, s{sM}, s{T0}')
    e(f's_mul_i32 s{sOX}, s{sRB}, {128*896}')
    e(f's_mul_i32 s{sO0}, s{sP0}, 112')
    e(f's_lshl_b32 s{sOB}, s{sCB}, 7')
    e(f's_lshl_b32 s{T0}, s{sFLA}, 7'); e(f's_add_u32 s{T1}, s{sO0}, 112'); e(f's_add_u32 s{T4}, s{sO0}, 224')
    e(f's_cmp_lt_u32 s{sCB}, 4')
    e(f's_cselect_b32 s{sISY}, 1, 0')
    e(f's_cselect_b32 s{sO1}, s{T1}, s{T0}'); e(f's_cselect_b32 s{sO2}, s{T4}, s{T0}')
    e(f's_mov_b32 s{T0}, {64*3584}'); e(f's_cselect_b32 s{sSTEP}, {64*2688}, s{T0}')
    e(f's_cselect_b64 vcc, -1, 0')
    e(f's_mov_b32 s{sHI}, 0'); e(f's_mov_b32 s{sHI+1}, -1')
    e(f'v_lshrrev_b32 v2, 3, v{LANE}'); e(f'v_and_b32 v3, 7, v{LANE}')
    e(f'v_lshlrev_b32 v{L16}, 4, v{LANE}')
    e(f'v_lshrrev_b32 v4, 1, v2'); e(f'v_xor_b32 v4, v4, v3'); e(f'v_lshlrev_b32 v4, 4, v4')
    e(f's_lshl_b32 s{T0}, s{sW}, 4'); e(f'v_add_u32 v5, s{T0}, v2'); e(f'v_mul_u32_u24 v5, 896, v5')
    e(f'v_add_u32 v{VX[0]}, v5, v4'); e(f'v_xor_b32 v4, 64, v4'); e(f'v_add_u32 v5, {8*896}, v5'); e(f'v_add_u32 v{VX[1]}, v5, v4')
    e(f'v_lshlrev_b32 v4, 1, v2'); e(f'v_and_b32 v4, 4, v4'); e(f'v_xor_b32 v4, v4, v3')
    e(f's_lshl_b32 s{T0}, s{sW}, 3'); e(f'v_add_u32 v5, s{T0}, v2')
    e(f'v_mul_u32_u24 v6, 3584, v5'); e(f'v_lshlrev_b32 v7, 4, v4'); e(f'v_add_u32 v{VG}, v6, v7')
    e(f'v_xor_b32 v7, 32, v7'); e(f'v_add_u32 v{VU}, v6, v7')
    e(f'v_mul_u32_u24 v6, 2688, v5'); e(f'v_lshrrev_b32 v7, 2, v4'); e(f'v_mul_u32_u24 v7, 56, v7'); e(f'v_add_u32 v6, v6, v7')
    e(f'v_and_b32 v7, 3, v4'); e(f'v_lshlrev_b32 v7, 4, v7'); e(f'v_add_u32 v{VI[0]}, v6, v7')
    e(f'v_cndmask_b32 v{VI[1]}, v{VG}, v{VI[0]}, vcc'); e(f'v_cndmask_b32 v{VI[2]}, v{VU}, v{VI[0]}, vcc')
    e('s_waitcnt lgkmcnt(0)')
    if OPT['stamps']:
        e(f's_mov_b32 s3, s{T2}'); e(f's_mov_b32 s{sST}, s100')
        for i in range(1, 10): e(f's_mov_b32 s{sST+i}, 0')
    e(f's_load_dword s{sTAG}, s[10:11], {WS_NONCE}')
    def mk(b, p, n):
        e(f's_mov_b32 s{b}, s{p}'); e(f's_mov_b32 s{b+1}, s{p+1}'); e(f's_mov_b32 s{b+2}, {n}'); e(f's_mov_b32 s{b+3}, 0x20000')
    mk(SX, 4, 2048 * 896); mk(SI0, 6, 448 * 2688)
    e(f's_cmp_lt_u32 s{sCB}, 4')
    for b, p in ((SI1, 12), (SI2, 14)):
        e(f's_cselect_b32 s{b}, s6, s{p}'); e(f's_cselect_b32 s{b+1}, s7, s{p+1}')
        e(f's_mov_b32 s{T0}, {448*3584}'); e(f's_cselect_b32 s{b+2}, {448*2688}, s{T0}'); e(f's_mov_b32 s{b+3}, 0x20000')
    for c in range(3): L.extend(dma_A(c))
    mk(SG, 12, 448 * 3584); mk(SU, 14, 448 * 3584); mk(SWS, 10, WS_END); mk(SD, 16, 1792 * 896); mk(SWO, 8, 448 * 896); mk(SOUT, 18, 2048 * 896)
    e(f'v_and_b32 v2, 31, v{LANE}'); e(f'v_lshrrev_b32 v3, 5, v{LANE}')
    e(f'v_bfe_u32 v4, v{LANE}, 1, 3'); e(f'v_xor_b32 v4, v4, v3'); e(f'v_lshlrev_b32 v4, 4, v4')
    e(f's_and_b32 s{T0}, s{sW}, 3'); e(f's_lshl_b32 s{T0}, s{T0}, 12')
    e(f'v_lshl_add_u32 v4, v2, 7, v4'); e(f'v_add_u32 v{AX[0]}, s{T0}, v4')
    for s in (1, 2, 3): e(f'v_xor_b32 v{AX[s]}, {32*s}, v{AX[0]}')
    e(f'v_bfe_u32 v4, v{LANE}, 2, 2')
    e(f'v_bfe_u32 v5, v{LANE}, 3, 1'); e(f'v_lshlrev_b32 v5, 6, v5')
    e(f'v_and_b32 v6, 3, v{LANE}'); e(f'v_lshlrev_b32 v6, 3, v6')
    e(f'v_or_b32 v5, v5, v6'); e(f'v_lshl_add_u32 v5, v4, 7, v5')
    e(f'v_lshrrev_b32 v6, 4, v{LANE}'); e(f'v_lshlrev_b32 v6, 5, v6'); e(f'v_xor_b32 v6, v6, v5'); e(f'v_add_u32 v{AS}, s{sW1K}, v6')
    e(f'v_add_u32 v{AS2}, {LI[2]}, v{AS}'); e(f'v_add_u32 v{AS}, {LI[0]}, v{AS}')
    e(f'v_lshl_add_u32 v5, v3, 10, v5')
    e(f'v_bfe_u32 v6, v{LANE}, 4, 1')
    e(f'v_lshlrev_b32 v7, 5, v6'); e(f'v_xor_b32 v5, v5, v7')
    e(f's_lshl_b32 s{T0}, s{sCG}, 6'); e(f'v_xor_b32 v5, s{T0}, v5')
    e(f'v_add_u32 v{AW[0]}, {LI[0]}, v5')
    e(f'v_lshl_add_u32 v{ABW[0]}, v6, 13, v5'); e(f'v_add_u32 v{ABW[0]}, {LI[1]+8192}, v{ABW[0]}'); e(f'v_xor_b32 v{ABW[1]}, 32, v{ABW[0]}')
    e(f'v_mul_u32_u24 v7, {LI[2]-LI[1]}, v6'); e(f'v_add_u32 v7, v7, v5'); e(f'v_add_u32 v7, {LI[1]}, v7'); e(f'v_xor_b32 v8, 32, v7')
    e(f'v_add_u32 v9, {LI[1]}, v5'); e(f'v_add_u32 v10, {LI[2]}, v5')
    e(f'v_cndmask_b32 v{AW[1]}, v7, v9, vcc'); e(f'v_cndmask_b32 v{AW[2]}, v8, v10, vcc')
    e(f'v_and_b32 v4, 7, v{LANE}'); e(f'v_bfe_u32 v5, v{LANE}, 3, 1'); e(f'v_bfe_u32 v6, v{LANE}, 1, 1'); e(f'v_xor_b32 v5, v5, v6')
    e(f'v_lshlrev_b32 v5, 6, v5'); e(f'v_lshl_add_u32 v5, v4, 7, v5'); e(f'v_add_u32 v5, s{sW1K}, v5'); e(f'v_add_u32 v{APATCH}, {LI[0]+56}, v5')
    e(f'v_mov_b32 v{PCONST}, 0x3f80'); e(f'v_mov_b32 v{PCONST+1}, 0')
    e(f'v_add_u32 v{ASX}, s{sW2K}, v{L16}')
    for r in CACC + SQ: e(f'v_mov_b32 v{r}, 0')
    for r in (CB_ + 2, CB_ + 3, CA_ + 2, CA_ + 3): e(f'v_mov_b32 v{r}, 0')
    e(f'v_lshlrev_b32 v4, 2, v0'); e(f'v_add_u32 v4, {LC}, v4'); e(f'ds_write_b32 v4, v{CACC[0]}')
    qs = (28 ** -0.5) * math.log2(math.e)
    import struct
    qsb = struct.unpack('<I', struct.pack('<f', qs))[0]
    e(f's_cmp_lt_u32 s{sP0}, 8'); e(f's_cselect_b32 s{sSCALE}, {qsb:#x}, 1.0')
    e('s_waitcnt lgkmcnt(0)')
    e(f's_add_u32 s{sTAG}, s{sTAG}, {TAGK:#x}')
    return L

def patch(c):
    return [f'ds_write_b64 v{APATCH}, v[{PCONST}:{PCONST+1}] offset:{(c%3)*8192}']

def unit_sum(src, acc):
    L = []
    for i in range(4):
        a, b = UT[(2*i) % 4], UT[(2*i + 1) % 4]
        L += [f'v_and_b32 v{a}, s{sMASK}, v{src+i}', f'v_lshlrev_b32 v{b}, 16, v{src+i}', f'v_add_f32 v{acc}, v{acc}, v{a}', f'v_add_f32 v{acc}, v{acc}, v{b}']
    return L
def unit_sq(src, acc):
    L = []
    for i in range(4):
        a, b = UT[(2*i) % 4], UT[(2*i + 1) % 4]
        L += [f'v_and_b32 v{a}, s{sMASK}, v{src+i}', f'v_lshlrev_b32 v{b}, 16, v{src+i}', f'v_fmac_f32 v{acc}, v{a}, v{a}', f'v_fmac_f32 v{acc}, v{b}, v{b}']
    return L
def side_stream(units):
    L = []
    L += units[0][0](SIDE[0])
    for u in range(len(units)):
        if u + 1 < len(units): L += units[u + 1][0](SIDE[(u + 1) & 1])
        L += units[u][1](SIDE[u & 1])
    return L
def side_A(c):
    sl = c % 3; U = []
    for I in range(3):
        off = (LI[I] - LI[0] if I < 2 else 0) + sl * 8192; ar = AS if I < 2 else AS2
        U.append((lambda b, off=off, ar=ar: [f'ds_read_b64_tr_b16 v[{b}:{b+1}], v{ar} offset:{off}', f'ds_read_b64_tr_b16 v[{b+2}:{b+3}], v{ar} offset:{off+512}'],
                  lambda b, I=I: unit_sum(b, CACC[I])))
    for a in range(2):
        off = LX + sl * 16384 + a * 1024
        U.append((lambda b, off=off: [f'ds_read_b128 v[{b}:{b+3}], v{ASX} offset:{off}'], lambda b, a=a: unit_sq(b, SQ[a])))
    return side_stream(U)

def reads_A(ks):
    c, s = ks >> 2, ks & 3; sl = c % 3; wf = WF[ks & 1]
    x = [f'ds_read_b128 {vr(XF+4*ks,4)}, v{AX[s]} offset:{LX + sl*16384}']
    w = []
    for t in range(3):
        o = sl * 8192 + s * 2048
        w.append([f'ds_read_b64_tr_b16 {vr(wf+4*t,2)}, v{AW[t]} offset:{o}', f'ds_read_b64_tr_b16 {vr(wf+4*t+2,2)}, v{AW[t]} offset:{o+512}'])
    return [x + w[0], w[1], w[2]]

BWIN_HI = LI[1] + 8192
def bwin(c): return BWIN_HI if BSLOT[c] >= BWIN_HI else 0
def reads_B(ks):
    c, s = ks >> 2, ks & 3; wf = WF[ks & 1]
    w = []
    pre = []
    if s == 0 and c > 0 and bwin(c) != bwin(c - 1):
        d = bwin(c) - bwin(c - 1)
        op = 'v_add_u32' if d > 0 else 'v_subrev_u32'
        pre = [f'{op} v{ABW[t]}, {abs(d)}, v{ABW[t]}' for t in range(2)]
    for t in range(2):
        o = BSLOT[c] - bwin(c) + s * 2048
        w.append([f'ds_read_b64_tr_b16 {vr(wf+4*t,2)}, v{ABW[t]} offset:{o}', f'ds_read_b64_tr_b16 {vr(wf+4*t+2,2)}, v{ABW[t]} offset:{o+512}'])
    w[0] = pre + w[0]
    return w
as_base = [LI[0]]
def side_B(c):
    U = []
    d = BSLOT[c] - as_base[0]; as_base[0] = BSLOT[c]
    op = 'v_add_u32' if d > 0 else 'v_subrev_u32'
    for I in range(2):
        off = I * 8192
        U.append((lambda b, off=off: [f'ds_read_b64_tr_b16 v[{b}:{b+1}], v{AS} offset:{off}', f'ds_read_b64_tr_b16 v[{b+2}:{b+3}], v{AS} offset:{off+512}'],
                  lambda b, I=I: unit_sum(b, CACC[3 + I])))
    return [f'{op} v{AS}, {abs(d)}, v{AS}'] + side_stream(U)

def split(L, n):
    return [L[(len(L) * i) // n:(len(L) * (i + 1)) // n] for i in range(n)]

def cadd(idx):
    L = [f'v_lshlrev_b32 v{UT[0]}, 2, v{LANE}', f'v_add_u32 v{UT[0]}, {LC}, v{UT[0]}']
    for i in idx: L.append(f'ds_add_f32 v{UT[0]}, v{CACC[i]} offset:{i*256}')
    return L

def pass_A():
    L = []
    L += [WaitTag('A0')] + patch(0) + [WaitLgkm0(), 's_barrier']
    L += stamp(1)
    for g in reads_A(0): L += g
    fill = {ks: [] for ks in range(28)}
    for c in range(7):
        ksl = [k for k in range(4*c - 1, 4*c + 3) if k >= 0]
        for k, part in zip(ksl, split(side_A(c), len(ksl))): fill[k] += part
    fin = cadd([0, 1, 2])
    for a in range(2):
        r = SQ[a]
        fin += [f'v_add_f32_dpp v{r}, v{r}, v{r} quad_perm:[1,0,3,2] row_mask:0xf bank_mask:0xf',
                f'v_add_f32_dpp v{r}, v{r}, v{r} quad_perm:[2,3,0,1] row_mask:0xf bank_mask:0xf',
                f'v_add_f32_dpp v{r}, v{r}, v{r} row_half_mirror row_mask:0xf bank_mask:0xf']
    fin += [f'v_lshrrev_b32 v{UT[1]}, 3, v{LANE}', f's_lshl_b32 s{T0}, s{sW}, 6', f's_add_u32 s{T0}, s{T0}, {LSQ}',
            f'v_lshl_add_u32 v{UT[1]}, v{UT[1]}, 2, s{T0}',
            f'ds_write_b32 v{UT[1]}, v{SQ[0]}', f'ds_write_b32 v{UT[1]}, v{SQ[1]} offset:32']
    fill[26] += fin
    for ks in range(28):
        c, s = ks >> 2, ks & 3
        pre = []; dm = []
        if s == 2:
            if c < 6: pre = [WaitTag(f'A{c+1}')] + patch(c + 1)
        if s == 3:
            if c == 6: pre = [WaitTag('B0', 'B1', 'B2')]
            pre += [WaitLgkm0(), 's_barrier']
            if c + 3 <= 6: dm = dma_A(c + 3)
            elif c == 4: dm = dma_B(0) + dma_B(1) + dma_B(2)
            elif c == 5: dm = dma_B(3) + dma_B(4) + dma_B(5) + dma_B(6)
        nxt = reads_A(ks + 1) if ks < 27 else [[], [], []]
        f = split(fill[ks], 3); d = split(dm, 3)
        L += pre
        for t in range(3):
            L += nxt[t]
            L.append(mfma(ACCA[t], WF[ks & 1] + 4*t, XF + 4*ks, None if ks == 0 else ACCA[t]))
            L += d[t] + f[t]
    return L

def stats():
    a, b, c, d = UT
    L = [f'v_and_b32 v{a}, 31, v{LANE}', f's_and_b32 s{T0}, s{sW}, 3', f's_lshl_b32 s{T0}, s{T0}, 7', f's_add_u32 s{T0}, s{T0}, {LSQ}',
         f'v_lshl_add_u32 v{a}, v{a}, 2, s{T0}', f'ds_read_b32 v{RS2}, v{a}',
         f'v_mov_b32 v{a}, v{ACCA[0]+12}', f'v_mov_b32 v{b}, v{ACCA[0]+12}',
         f'v_permlane32_swap_b32 v{a}, v{b}',
         f'v_mul_f32 v{b}, {f2u(-1.0/448):#x}, v{b}',
         f'v_mul_f32 v{RS2}, {f2u(1.0/448):#x}, v{RS2}',
         f'v_fma_f32 v{RS2}, -v{b}, v{b}, v{RS2}',
         f'v_max_f32 v{RS2}, 0, v{RS2}',
         f'v_add_f32 v{RS2}, {f2u(1e-5):#x}, v{RS2}',
         f'v_rsq_f32 v{RSTD}, v{RS2}',
         f'v_cndmask_b32 v{b}, v{b}, 0, s[{sHI}:{sHI+1}]',
         f'v_and_b32 v{c}, s{sMASK}, v{b}', f'v_sub_f32 v{d}, v{b}, v{c}',
         f'v_mul_f32 v{RS2}, v{RSTD}, v{RSTD}',
         f'v_cvt_pk_bf16_f32 v{CB_}, v{c}, v{c}', f'v_cvt_pk_bf16_f32 v{CB_+1}, v{d}, v{CB_+2}',
         f'v_mul_f32 v{RSTD}, s{sSCALE}, v{RSTD}']
    return L
import struct
def f2u(x): return struct.unpack('<I', struct.pack('<f', x))[0]

def caddr_head(dst):
    return [f'v_and_b32 v{dst}, 31, v{LANE}', f's_lshl_b32 s{T0}, s{sCG}, 7', f's_add_u32 s{T0}, s{T0}, {LC}', f'v_lshl_add_u32 v{dst}, v{dst}, 2, s{T0}']
def caddr_gu(dst):
    return [f'v_and_b32 v{dst}, 31, v{LANE}', f'v_bfe_u32 v{TMPV}, v{LANE}, 4, 1', f'v_lshlrev_b32 v{dst}, 2, v{dst}', f'v_lshl_add_u32 v{dst}, v{TMPV}, 8, v{dst}',
            f's_lshl_b32 s{T0}, s{sCG}, 7', f's_add_u32 s{T0}, s{T0}, {LC}', f'v_add_u32 v{dst}, s{T0}, v{dst}']
def correct(acc, creg):
    a, b = UT[2], UT[3]
    return [f'v_and_b32 v{a}, s{sMASK}, v{creg}', f'v_sub_f32 v{b}, v{creg}, v{a}', f'v_lshrrev_b32 v{CA_+1}, 16, v{creg}',
            f'v_cvt_pk_bf16_f32 v{CA_}, v{a}, v{b}', mfma(acc, CA_, CB_, acc)]
def epi_head_pack(acc, isv):
    L = [f'v_mul_f32 v{acc+i}, v{RSTD}, v{acc+i}' for i in range(16)]
    L += [f'v_cvt_pk_bf16_f32 v{acc+i}, v{acc+2*i}, v{acc+2*i+1}' for i in range(8)]
    if isv:
        L += [f'v_mov_b32 v{acc+8}, 0x3f80', f'v_cndmask_b32 v{acc+6}, v{acc+6}, v{acc+8}, s[{sHI}:{sHI+1}]']
    else:
        L += [f'v_cndmask_b32 v{acc+6}, v{acc+6}, 0, s[{sHI}:{sHI+1}]']
    L += [f'v_cndmask_b32 v{acc+7}, v{acc+7}, 0, s[{sHI}:{sHI+1}]']
    return L
def head_soff(I):
    return [f's_add_u32 s{T0}, s{sP0}, {I}', f's_lshl_b32 s{T0}, s{T0}, 1', f's_add_u32 s{T0}, s{T0}, s{sCG}',
            f's_lshl_b32 s{T1}, s{T0}, 17', f's_lshl_b32 s{T2}, s{sM}, 11', f's_add_u32 s{T1}, s{T1}, s{T2}', f's_add_u32 s{T1}, s{T1}, {WS_QKV}',
            f's_lshl_b32 s{T2}, s{sM}, 4', f's_add_u32 s{T2}, s{T2}, s{T0}', f's_lshl_b32 s{T2}, s{T2}, 11', f's_add_u32 s{T2}, s{T2}, {WS_O}',
            f's_cmp_lt_u32 s{T0}, 16', f's_cselect_b32 s{T2}, s{T2}, {WS_END}']
def store4(src, soff, imm=0, tag='st'):
    return Ins(f'buffer_store_dwordx4 {vr(src,4)}, v{L16}, {srd(SWS)}, s{soff} offen offset:{imm} sc1', tag)
def epi_T(acc, I):
    L = epi_head_pack(acc, False) + head_soff(I)
    L += [f'v_mov_b32 v{acc+8+i}, -1' for i in range(4)]
    L += [store4(acc, T1, 0), store4(acc + 4, T1, 1024), store4(acc + 8, T2, 0), store4(acc + 8, T2, 1024)]
    return L
def epi_V(acc):
    L = epi_head_pack(acc, True) + head_soff(0)
    a, b, c, d = UT
    L += [f'v_and_b32 v{a}, 31, v{LANE}', f'v_lshrrev_b32 v{b}, 5, v{LANE}', f'v_bfe_u32 v{c}, v{LANE}, 1, 3', f'v_xor_b32 v{b}, v{b}, v{c}',
          f'v_lshlrev_b32 v{b}, 3, v{b}', f'v_lshl_add_u32 v{a}, v{a}, 6, v{b}', f'v_add_u32 v{a}, s{sW2K}, v{a}']
    for i in range(4):
        L += [f'v_xor_b32 v{b}, {16*i}, v{a}', f'ds_write_b64 v{b}, {vr(acc+2*i,2)} offset:{LVT}']
    L += [f'v_bfe_u32 v{a}, v{LANE}, 2, 2', f'v_lshrrev_b32 v{b}, 5, v{LANE}', f'v_lshl_add_u32 v{a}, v{b}, 2, v{a}',
          f'v_lshrrev_b32 v{b}, 1, v{a}',
          f'v_bfe_u32 v{c}, v{LANE}, 4, 1', f'v_and_b32 v{d}, 3, v{LANE}', f'v_lshl_add_u32 v{c}, v{c}, 2, v{d}',
          f'v_xor_b32 v{b}, v{b}, v{c}', f'v_lshlrev_b32 v{b}, 3, v{b}', f'v_lshl_add_u32 v{a}, v{a}, 6, v{b}', f'v_add_u32 v{a}, s{sW2K}, v{a}',
          f'v_xor_b32 v{b}, 32, v{a}', WaitLgkm0()]
    for i in range(4):
        L.append(f'ds_read_b64_tr_b16 {vr(acc+8+2*i,2)}, v{b if i & 1 else a} offset:{LVT + 512*i}')
    L += [store4(acc + 8, T1, 0), store4(acc + 12, T1, 1024)]
    return L
def epi_gu(acc, fl, j):
    L = []
    for i in range(8):
        L += [f'v_max_f32 v{acc+i}, 0, v{acc+i}', f'v_mul_f32 v{acc+8+i}, v{RS2}, v{acc+8+i}', f'v_mul_f32 v{acc+i}, v{acc+i}, v{acc+8+i}']
    L += [f'v_cvt_pk_bf16_f32 v{acc+i}, v{acc+2*i}, v{acc+2*i+1}' for i in range(4)]
    L += [f's_mul_i32 s{T1}, s{sM}, 28', f's_add_u32 s{T1}, s{T1}, s{fl}', f's_lshl_b32 s{T1}, s{T1}, 1', f's_add_u32 s{T1}, s{T1}, s{sCG}',
          f's_lshl_b32 s{T1}, s{T1}, 11', f's_add_u32 s{T1}, s{T1}, {WS_H}', store4(acc, T1, 1024 * j)]
    return L
def set_flag(base):
    return [f's_lshl_b32 s{T0}, s{sRB}, 4', f's_add_u32 s{T0}, s{T0}, s{sCB}', f's_lshl_b32 s{T0}, s{T0}, 5', f's_add_u32 s{T0}, s{T0}, s{sW}',
            f's_lshl_b32 s{T0}, s{T0}, 2', f's_add_u32 s{T0}, s{T0}, {base}',
            f'v_mov_b32 v{TMPV}, s{sTAG}', 's_mov_b64 exec, 1',
            Ins(f'buffer_store_dword v{TMPV}, v{L16}, {srd(SWS)}, s{T0} offen sc1', 'flag'), 's_mov_b64 exec, -1']

def pass_B(flag_at):
    L = []
    for g in reads_B(0): L += g
    fill = {ks: [] for ks in range(28)}
    for c in range(7):
        ksl = [k for k in range(4*c - 1, 4*c + 3) if k >= 0]
        for k, part in zip(ksl, split(side_B(c), len(ksl))): fill[k] += part
    fill[26] += cadd([3, 4])
    for ks in range(28):
        c, s = ks >> 2, ks & 3
        pre = []
        if ks == flag_at: pre += [WaitTag('st')] + set_flag(WS_F1)
        if s == 3 and c == 2: pre += [WaitTag('B3', 'B4', 'B5', 'B6'), 's_barrier']
        if s == 3 and c == 6: pre += [WaitLgkm0(), 's_barrier']
        nxt = reads_B(ks + 1) if ks < 27 else [[], []]
        f = split(fill[ks], 2)
        L += pre
        for t in range(2):
            L += nxt[t]
            L.append(mfma(ACCB[t], WF[ks & 1] + 4*t, XF + 4*ks, None if ks == 0 else ACCB[t]))
            L += f[t]
    return L

QF = 128
OA = 0
NB = 4
KF = [64, 72, 80, 88]; VF = [96, 104, 112, 120]
SB = [184, 204]
PB = [160, 168]
EB = 176
def poll(addr, label, tmp):
    return [f's_mov_b32 s{T5}, 0', f'{label}:',
            f'buffer_load_dword v{tmp}, v{addr}, {srd(SWS)}, 0 offen sc1', f's_add_u32 s{T5}, s{T5}, 1', 's_waitcnt vmcnt(0)',
            f'v_cmp_ne_u32 vcc, s{sTAG}, v{tmp}', f's_cmp_lt_u32 s{T5}, 100000', f's_cselect_b64 s[{T2}:{T3}], -1, 0',
            f's_and_b64 vcc, vcc, s[{T2}:{T3}]', f's_cbranch_vccnz {label}']
sHD, sQB, sKO, sVO = 66, 67, 68, 69
def ld4(dst, soff, imm, tag=None):
    return Ins(f'buffer_load_dwordx4 {vr(dst,4)}, v{L16}, {srd(SWS)}, s{soff} offen offset:{imm} sc1', tag)
def attn_setup():
    L = []; e = L.append
    e(f's_lshr_b32 s{T0}, s{sIDX}, 4'); e(f's_lshl_b32 s{sHD}, s{sXCD}, 1'); e(f's_add_u32 s{sHD}, s{sHD}, s{T0}'); e(f's_and_b32 s{sQB}, s{sIDX}, 15')
    tbl = sum(v << (4 * i) for i, v in enumerate([0, 0, 0, 4, 5, 1, 1, 1]))
    e(f's_lshl_b32 s{T1}, s{sXCD}, 2'); e(f's_lshr_b32 s{T1}, {tbl:#x}, s{T1}'); e(f's_and_b32 s{T1}, s{T1}, 15')
    a, b, c, d = 200, 201, 202, 203
    e(f'v_and_b32 v{a}, 15, v{LANE}'); e(f's_lshl_b32 s{T2}, s{sW}, 4'); e(f'v_add_u32 v{a}, s{T2}, v{a}')
    e(f'v_and_b32 v{b}, 3, v{LANE}'); e(f's_lshl_b32 s{T2}, s{sQB}, 2'); e(f'v_add_u32 v{b}, s{T2}, v{b}')
    e(f'v_cndmask_b32 v{a}, v{a}, v{b}, s[{sHI}:{sHI+1}]')
    e(f's_add_u32 s{T2}, s{T1}, 2'); e(f's_add_u32 s{T3}, s{sXCD}, 8')
    e(f'v_mov_b32 v{b}, s{T2}'); e(f'v_mov_b32 v{c}, s{T3}'); e(f'v_cmp_lt_u32 vcc, 15, v{LANE}'); e(f'v_cndmask_b32 v{b}, v{b}, v{c}, vcc')
    e(f'v_mov_b32 v{c}, s{T1}'); e(f'v_cndmask_b32 v{b}, v{b}, v{c}, s[{sHI}:{sHI+1}]')
    e(f'v_lshrrev_b32 v{c}, 2, v{a}'); e(f'v_lshl_add_u32 v{b}, v{c}, 4, v{b}'); e(f'v_lshlrev_b32 v{b}, 7, v{b}')
    e(f'v_and_b32 v{a}, 3, v{a}'); e(f'v_lshl_add_u32 v{a}, v{a}, 2, v{b}')
    e(f's_lshl_b32 s{T0}, s{T0}, 4'); e(f's_add_u32 s{T0}, s{T0}, {WS_F1}'); e(f'v_add_u32 v{a}, s{T0}, v{a}')
    L += [Sync()] + set_flag(WS_F2) + stamp(6) + poll(a, 'L_pollqkv', b)
    e(f's_lshl_b32 s{T0}, s{sHD}, 17'); e(f's_add_u32 s{T0}, s{T0}, {WS_QKV}')
    e(f's_lshl_b32 s{T1}, s{sW}, 15'); e(f's_add_u32 s{sKO}, s{T0}, s{T1}'); e(f's_add_u32 s{sKO}, s{sKO}, {16*131072}'); e(f's_add_u32 s{sVO}, s{sKO}, {16*131072}')
    e(f's_lshl_b32 s{T1}, s{sQB}, 13'); e(f's_add_u32 s{T0}, s{T0}, s{T1}')
    L += [ld4(KF[0], sKO, 0), ld4(KF[0] + 4, sKO, 1024)]
    for j in range(4):
        e(f's_add_u32 s{T1}, s{sW}, {1+j}'); e(f's_and_b32 s{T1}, s{T1}, 3'); e(f's_lshl_b32 s{T1}, s{T1}, 11'); e(f's_add_u32 s{T1}, s{T1}, s{T0}')
        L += [ld4(QF + 8*j, T1, 0), ld4(QF + 8*j + 4, T1, 1024)]
    L += [ld4(VF[0], sVO, 0), ld4(VF[0] + 4, sVO, 1024)]
    for kt in range(1, NB - 1):
        imm = 2048 * (kt & 1)
        if imm == 0: L += [f's_add_u32 s{sKO}, s{sKO}, 4096', f's_add_u32 s{sVO}, s{sVO}, 4096']
        L += [ld4(KF[kt], sKO, imm), ld4(KF[kt] + 4, sKO, imm + 1024), ld4(VF[kt], sVO, imm), ld4(VF[kt] + 4, sVO, imm + 1024)]
    return L
def attn_main():
    L = []
    NT = 64
    K = lambda i: KF[(i >> 2) % NB]; V = lambda i: VF[(i >> 2) % NB]
    Q = lambda i: QF + 8 * (i & 3); O = lambda i: OA + 16 * (i & 3)
    S = lambda i: SB[i & 1]; P = lambda i: PB[i & 1]
    qka = lambda i: mfma(S(i), K(i), Q(i), None)
    qkb = lambda i: mfma(S(i), K(i) + 4, Q(i) + 4, S(i))
    pva = lambda i: mfma(O(i), V(i), P(i), None if i < 4 else O(i))
    pvb = lambda i: mfma(O(i), V(i) + 4, P(i) + 4, O(i))
    ex = lambda i, g: [f'v_exp_f32 v{EB + (4*g + j) % 8}, v{S(i) + 4*g + j}' for j in range(4)]
    cv = lambda i, g: [f'v_cvt_pk_bf16_f32 v{P(i) + 2*g + j}, v{EB + (4*g + 2*j) % 8}, v{EB + (4*g + 2*j + 1) % 8}' for j in range(2)]
    AR = 200
    pre = [f's_add_u32 s{T0}, s{sW}, 1']
    wr = {}
    for j in range(3):
        pre += [f's_add_u32 s{T1}, s{T0}, {j}', f's_and_b32 s{T1}, s{T1}, 3', f's_mul_i32 s{T1}, s{T1}, {3*4096}', f's_add_u32 s{T1}, s{T1}, {LSCR + j*4096}',
                f'v_add_u32 v{AR+j}, s{T1}, v{L16}']
    pre += [f's_mul_i32 s{T1}, s{sW}, {3*4096}', f's_add_u32 s{T1}, s{T1}, {LSCR}', f'v_add_u32 v{AR+3}, s{T1}, v{L16}']
    L += pre
    L += [qka(0), qkb(0)]
    for i in range(NT + 1):
        kt, j = i >> 2, i & 3
        extra = [[], [], [], []]
        if i < NT and kt + NB - 1 < 16:
            nb = (kt + NB - 1) % NB; imm = 2048 * ((kt + NB - 1) & 1)
            adv = lambda s: [f's_add_u32 s{s}, s{s}, 4096'] if imm == 0 else []
            if j == 0: extra[0] = adv(sKO) + [ld4(KF[nb], sKO, imm)]; extra[2] = [ld4(KF[nb] + 4, sKO, imm + 1024)]
            if j == 1: extra[0] = adv(sVO) + [ld4(VF[nb], sVO, imm)]; extra[2] = [ld4(VF[nb] + 4, sVO, imm + 1024)]
        if i + 1 < NT: L.append(qka(i + 1))
        if i > 0: L += cv(i - 1, 3)
        if i < NT: L += ex(i, 0)
        L += extra[0]
        if i + 1 < NT: L.append(qkb(i + 1))
        if i < NT: L += cv(i, 0) + ex(i, 1)
        L += extra[1]
        if i > 0: L.append(pvb(i - 1))
        if i < NT: L += cv(i, 1) + ex(i, 2)
        L += extra[2]
        if i < NT:
            L.append(pva(i)); L += cv(i, 2) + ex(i, 3)
        if i - 1 >= NT - 4 and i - 1 < NT - 1:
            jj = (i - 1) & 3
            L += [f'ds_write_b128 v{AR+jj}, {vr(OA + 16*jj + 4*q, 4)} offset:{1024*q}' for q in range(4)]
    L += stamp(4)
    L += [WaitLgkm0(), 's_barrier']
    own = OA + 48
    for j in range(3):
        L += [f'ds_read_b128 {vr(OA + 16*j + 4*q, 4)}, v{AR+3} offset:{4096*j + 1024*q}' for q in range(4)]
    for j in range(3):
        L += [f'v_add_f32 v{own+r}, v{own+r}, v{OA + 16*j + r}' for r in range(16)]
    return L
def attn_finish():
    own = OA + 48
    a, b = 200, 201
    L = ['L_fin:',
         f'v_mov_b32 v{a}, v{own+12}', f'v_mov_b32 v{b}, v{own+12}', f'v_permlane32_swap_b32 v{a}, v{b}',
         f'v_rcp_f32 v{a}, v{b}',
         f'v_cmp_nle_f32 vcc, {f2u(2.0**-40):#x}, v{b}', f's_mov_b32 s{T0}, {f2u(2.0**60):#x}', f'v_cmp_nle_f32 s[{T2}:{T3}], v{b}, s{T0}',
         f's_or_b64 vcc, vcc, s[{T2}:{T3}]', f's_and_b64 vcc, vcc, s[{T4}:{T5}]', 's_cbranch_vccnz L_slow']
    L += [f'v_mul_f32 v{own+r}, v{a}, v{own+r}' for r in range(16)]
    L += [f'v_cvt_pk_bf16_f32 v{own+i}, v{own+2*i}, v{own+2*i+1}' for i in range(8)]
    L += [f'v_cndmask_b32 v{own+6}, v{own+6}, 0, s[{sHI}:{sHI+1}]', f'v_cndmask_b32 v{own+7}, v{own+7}, 0, s[{sHI}:{sHI+1}]']
    L += [f's_lshl_b32 s{T0}, s{sQB}, 2', f's_add_u32 s{T0}, s{T0}, s{sW}', f's_lshl_b32 s{T0}, s{T0}, 4', f's_add_u32 s{T0}, s{T0}, s{sHD}',
          f's_lshl_b32 s{T0}, s{T0}, 11', f's_add_u32 s{T0}, s{T0}, {WS_O}',
          store4(own, T0, 0), store4(own + 4, T0, 1024)]
    L += stamp(5) + dump_stamps()
    L += ['s_endpgm']
    return L
def attn_slow():
    own = OA + 48; Q = QF + 24; S = SB[0]; K = KF[0]; V = VF[0]; P = PB[0]; M = 220
    L = ['L_slow:',
         f's_lshl_b32 s{T0}, s{sHD}, 17', f's_add_u32 s{sKO}, s{T0}, {WS_QKV + 16*131072}', f's_mov_b32 s{T1}, 0', f'v_mov_b32 v{M}, 0xff800000',
         'L_slow1:', ld4(K, sKO, 0), ld4(K + 4, sKO, 1024), 's_waitcnt vmcnt(0)',
         mfma(S, K, Q, None), mfma(S, K + 4, Q + 4, S)]
    L += [f'v_max3_f32 v{M}, v{S+2*i}, v{S+2*i+1}, v{M}' for i in range(8)]
    L += [f's_add_u32 s{sKO}, s{sKO}, 2048', f's_add_u32 s{T1}, s{T1}, 1', f's_cmp_lt_u32 s{T1}, 64', 's_cbranch_scc1 L_slow1',
          f'v_mov_b32 v{M+1}, v{M}', f'v_mov_b32 v{M+2}, v{M}', f'v_permlane32_swap_b32 v{M+1}, v{M+2}', f'v_max_f32 v{M}, v{M+1}, v{M+2}',
          f's_add_u32 s{sKO}, s{T0}, {WS_QKV + 16*131072}', f's_add_u32 s{sVO}, s{sKO}, {16*131072}', f's_mov_b32 s{T1}, 0']
    L += [f'v_mov_b32 v{own+r}, 0' for r in range(16)]
    L += ['L_slow2:', ld4(K, sKO, 0), ld4(K + 4, sKO, 1024), ld4(V, sVO, 0), ld4(V + 4, sVO, 1024), 's_waitcnt vmcnt(0)',
          mfma(S, K, Q, None), mfma(S, K + 4, Q + 4, S)]
    L += [f'v_sub_f32 v{S+r}, v{S+r}, v{M}' for r in range(16)]
    L += [f'v_exp_f32 v{S+r}, v{S+r}' for r in range(16)]
    L += [f'v_cvt_pk_bf16_f32 v{P+i}, v{S+2*i}, v{S+2*i+1}' for i in range(8)]
    L += [mfma(own, V, P, own), mfma(own, V + 4, P + 4, own),
          f's_add_u32 s{sKO}, s{sKO}, 2048', f's_add_u32 s{sVO}, s{sVO}, 2048', f's_add_u32 s{T1}, s{T1}, 1', f's_cmp_lt_u32 s{T1}, 64', 's_nop 7', 's_cbranch_scc1 L_slow2',
          's_nop 15', f's_mov_b64 s[{T4}:{T5}], 0', 's_branch L_fin']
    return L

HACC = 0
HF = 64
NH = 18
HW = [208, 216]
XR = 224
VH = [232, 233]; VD = 234; AD = [235, 236]; AD2 = [237, 238]; AE = 239; VXO = 240
sKQ, sMB, sNB, sHO, sDO, sRB0, sTH, sKH = 66, 67, 68, 69, 70, 71, 75, 76
def helper():
    L = []; e = L.append
    L += [Sync(vm=True)] + set_flag(WS_F2) + stamp(6)
    e(f's_cmp_ge_u32 s{sIDX}, 28'); e('s_cbranch_scc1 L_idle')
    e(f's_sub_u32 s{sKQ}, s{sW}, 4'); e(f's_and_b32 s{sTH}, s{sKQ}, 1'); e(f's_lshr_b32 s{sKH}, s{sKQ}, 1')
    e(f's_and_b32 s{T0}, s{sIDX}, 3'); e(f's_lshl_b32 s{sMB}, s{sXCD}, 2'); e(f's_add_u32 s{sMB}, s{sMB}, s{T0}'); e(f's_lshr_b32 s{sNB}, s{sIDX}, 2')
    e(f's_mul_i32 s{sRB0}, s{sKQ}, {RING}')
    a, b, c, d = 200, 201, 202, 203
    e(f'v_lshrrev_b32 v{a}, 3, v{LANE}'); e(f'v_and_b32 v{b}, 7, v{LANE}'); e(f'v_lshlrev_b32 v{c}, 1, v{a}'); e(f'v_and_b32 v{c}, 4, v{c}'); e(f'v_xor_b32 v{b}, v{b}, v{c}')
    e(f'v_mul_u32_u24 v{a}, 896, v{a}'); e(f'v_lshl_add_u32 v{VD}, v{b}, 4, v{a}')
    e(f's_mul_i32 s{sDO}, s{sKQ}, {448*896}'); e(f's_lshl_b32 s{T0}, s{sNB}, 7'); e(f's_add_u32 s{sDO}, s{sDO}, s{T0}')
    def wdma(i, s, tag):
        o = []
        for h in range(2):
            o += dma(VD, s, sDO, sRB0, (i % 14) * 2048 + h * 1024, tag) + [f's_add_u32 s{sDO}, s{sDO}, {8*896}']
        return o
    for i in range(14): L += wdma(i, SD, f'W{i}')
    e(f'v_bfe_u32 v{a}, v{LANE}, 2, 2'); e(f'v_bfe_u32 v{b}, v{LANE}, 3, 1'); e(f'v_lshlrev_b32 v{b}, 6, v{b}')
    e(f'v_and_b32 v{c}, 3, v{LANE}'); e(f'v_lshlrev_b32 v{c}, 3, v{c}'); e(f'v_or_b32 v{b}, v{b}, v{c}'); e(f'v_lshl_add_u32 v{b}, v{a}, 7, v{b}')
    e(f'v_bfe_u32 v{c}, v{LANE}, 4, 1'); e(f'v_lshlrev_b32 v{c}, 5, v{c}'); e(f'v_xor_b32 v{b}, v{b}, v{c}')
    e(f's_lshl_b32 s{T0}, s{sKH}, 6'); e(f'v_xor_b32 v{b}, s{T0}, v{b}')
    e(f's_mul_i32 s{T0}, s{sKH}, {2*RING}'); e(f'v_add_u32 v{AD2[0]}, s{T0}, v{b}'); e(f'v_xor_b32 v{AD2[1]}, 64, v{AD2[0]}')
    e(f'v_lshrrev_b32 v{c}, 5, v{LANE}'); e(f'v_lshl_add_u32 v{b}, v{c}, 9, v{b}')
    e(f'v_add_u32 v{AD[0]}, s{sRB0}, v{b}'); e(f'v_xor_b32 v{AD[1]}, 64, v{AD[0]}')
    e(f's_lshl_b32 s{T0}, s{sMB}, 1'); e(f's_add_u32 s{T1}, s{T0}, s{sTH}'); e(f's_xor_b32 s{T2}, s{T1}, 1')
    e(f's_mul_i32 s{T3}, s{T1}, {112*1024}'); e(f'v_add_u32 v{VH[0]}, s{T3}, v{L16}'); e(f's_mul_i32 s{T3}, s{T2}, {112*1024}'); e(f'v_add_u32 v{VH[1]}, s{T3}, v{L16}')
    e(f's_mul_i32 s{sHO}, s{sKQ}, {28*1024}'); e(f's_add_u32 s{sHO}, s{sHO}, {WS_H}')
    e(f'v_and_b32 v{a}, 31, v{LANE}'); e(f's_lshl_b32 s{T3}, s{T1}, 5'); e(f'v_add_u32 v{a}, s{T3}, v{a}'); e(f'v_mul_u32_u24 v{a}, 896, v{a}')
    e(f's_lshl_b32 s{T3}, s{sNB}, 7'); e(f's_lshl_b32 s{T4}, s{sKH}, 6'); e(f's_add_u32 s{T3}, s{T3}, s{T4}'); e(f'v_add_u32 v{a}, s{T3}, v{a}')
    e(f'v_lshl_add_u32 v{VXO}, v{c}, 3, v{a}')
    for i in range(4): e(f'buffer_load_dwordx2 {vr(XR+2*i,2)}, v{VXO}, {srd(SX)}, 0 offen offset:{16*i}')
    e(f'v_lshl_add_u32 v{VXO}, v{c}, 4, v{a}')
    e(f'v_and_b32 v{a}, 15, v{LANE}'); e(f'v_lshlrev_b32 v{a}, 7, v{a}'); e(f'v_bfe_u32 v{b}, v{LANE}, 4, 1'); e(f'v_lshl_add_u32 v{a}, v{b}, 2, v{a}')
    e(f'v_lshl_add_u32 v{a}, v{c}, 4, v{a}')
    e(f's_lshr_b32 s{T0}, s{sMB}, 1'); e(f's_lshl_b32 s{T0}, s{T0}, 11'); e(f's_and_b32 s{T1}, s{sMB}, 1'); e(f's_lshl_b32 s{T1}, s{T1}, 3')
    e(f's_add_u32 s{T0}, s{T0}, s{T1}'); e(f's_add_u32 s{T0}, s{T0}, {WS_F2}'); e(f'v_add_u32 v{a}, s{T0}, v{a}')
    L += [Sync()] + poll(a, 'L_pollh', b)
    L += stamp(3)
    def hload(i):
        o = []
        if i and i % 4 == 0: o.append(f's_add_u32 s{sHO}, s{sHO}, 4096')
        for mi in range(2):
            o.append(Ins(f'buffer_load_dwordx4 {vr(HF + 8*(i % NH) + 4*mi, 4)}, v{VH[mi]}, {srd(SWS)}, s{sHO} offen offset:{(i%4)*1024} sc1'))
        return o
    for i in range(NH): L += hload(i)
    def wread(i):
        o = [WaitTag(f'W{i}')]
        for u in range(2):
            off = (i % 14) * 2048
            o += [f'ds_read_b64_tr_b16 {vr(HW[i&1] + 4*u, 2)}, v{AD[u]} offset:{off}', f'ds_read_b64_tr_b16 {vr(HW[i&1] + 4*u + 2, 2)}, v{AD[u]} offset:{off+1024}']
        return o
    L += wread(0)
    for i in range(28):
        if i == OPT['fpoint']: L += ['s_barrier'] + stamp(4)
        nxt = wread(i + 1) if i < 27 else []
        mm = [mfma(HACC + 32*mi + 16*u, HW[i & 1] + 4*u, HF + 8*(i % NH) + 4*mi, None if i == 0 else HACC + 32*mi + 16*u) for mi in range(2) for u in range(2)]
        L += [mm[0]] + nxt + [mm[1]]
        if i + 14 < 28: L += wdma(i + 14, SD, f'W{i+14}')
        elif i < 21:
            if i == 14:
                L += [f's_mul_i32 s{sDO}, s{sKQ}, {112*896}', f's_lshl_b32 s{T0}, s{sNB}, 7', f's_add_u32 s{sDO}, s{sDO}, s{T0}']
            L += wdma(i, SWO, 'WO')
        L += [mm[2], mm[3]]
        if i + NH < 28: L += hload(i + NH)
    e(f's_xor_b32 s{T0}, s{sKQ}, 1'); e(f's_mul_i32 s{T0}, s{T0}, {RING}'); e(f's_add_u32 s{T0}, s{T0}, {7*2048}')
    e(f's_add_u32 s{T1}, s{sRB0}, {7*2048}'); e(f'v_add_u32 v{AE}, s{T1}, v{L16}'); e(f'v_add_u32 v{a}, s{T0}, v{L16}')
    for i in range(8):
        L += [f'v_lshlrev_b32 v{c}, 16, v{XR+i}', f'v_and_b32 v{d}, s{sMASK}, v{XR+i}', f'v_add_f32 v{HACC+2*i}, v{HACC+2*i}, v{c}', f'v_add_f32 v{HACC+2*i+1}, v{HACC+2*i+1}, v{d}']
    L += [f'ds_write_b128 v{AE}, {vr(HACC + 32 + 4*q, 4)} offset:{1024*q}' for q in range(8)]
    L += stamp(7) + [WaitTag('WO'), WaitLgkm0(), 's_barrier']
    L += [f'ds_read_b128 {vr(HACC + 32 + 4*q, 4)}, v{a} offset:{1024*q}' for q in range(8)]
    L += [f'v_add_f32 v{HACC+r}, v{HACC+r}, v{HACC+32+r}' for r in range(32)]
    e(f's_lshl_b32 s{T0}, s{sMB}, 1'); e(f's_add_u32 s{T0}, s{T0}, s{sTH}'); e(f's_lshl_b32 s{T0}, s{T0}, 1'); e(f's_add_u32 s{T0}, s{T0}, s{sKH}')
    e(f's_lshl_b32 s{T0}, s{T0}, 14'); e(f's_add_u32 s{sHO}, s{T0}, {WS_O}')
    e(f's_mul_i32 s{T0}, s{sKH}, {2*RING}'); e(f's_sub_u32 s{T0}, s{T0}, s{sRB0}'); e(f'v_add_u32 v{AD[0]}, s{T0}, v{AD[0]}'); e(f'v_add_u32 v{AD[1]}, s{T0}, v{AD[1]}')
    L += [Sync(), f's_mov_b32 s{T5}, 0', 'L_pollo:', f's_mov_b32 s{T0}, s{sHO}']
    for f in range(16):
        if f and f % 4 == 0: e(f's_add_u32 s{T0}, s{T0}, 4096')
        L.append(ld4(HF + 4*f, T0, (f % 4) * 1024))
    e(f's_add_u32 s{T5}, s{T5}, 1')
    e(f'v_max_u32 v{c}, v{HF}, v{HF+1}')
    for r in range(2, 64, 2): e(f'v_max3_u32 v{c}, v{HF+r}, v{HF+r+1}, v{c}')
    L += [f'v_cmp_eq_u32 vcc, -1, v{c}', f's_cmp_lt_u32 s{T5}, 20000', f's_cselect_b64 s[{T2}:{T3}], -1, 0',
          f's_and_b64 vcc, vcc, s[{T2}:{T3}]', 's_cbranch_vccnz L_pollo']
    L += stamp(5)
    def oread(f):
        hd, st = f >> 1, f & 1
        base = (hd >> 2) * RING + ((hd & 3) * 28 + 16 * st) * 128
        o = []
        for u in range(2):
            o.append(f'ds_read_b64_tr_b16 {vr(HW[f&1] + 4*u, 2)}, v{AD[u]} offset:{base}')
            o.append(f'ds_read_b64_tr_b16 {vr(HW[f&1] + 4*u + 2, 2)}, v{AD2[u] if st else AD[u]} offset:{base+1024}')
        return o
    L += oread(0)
    for f in range(16):
        nxt = oread(f + 1) if f < 15 else []
        L += [mfma(HACC + 16, HW[f & 1] + 4, HF + 4*f, HACC + 16)] + nxt + [mfma(HACC, HW[f & 1], HF + 4*f, HACC)]
    e(f's_xor_b32 s{T0}, s{sKQ}, 2'); e(f's_mul_i32 s{T0}, s{T0}, {RING}'); e(f's_add_u32 s{T0}, s{T0}, {7*2048}'); e(f'v_add_u32 v{a}, s{T0}, v{L16}')
    L += [f'ds_write_b128 v{AE}, {vr(HACC + 16 + 4*q, 4)} offset:{8192 + 1024*q}' for q in range(4)]
    L += [WaitLgkm0(), 's_barrier']
    L += [f'ds_read_b128 {vr(HACC + 16 + 4*q, 4)}, v{a} offset:{8192 + 1024*q}' for q in range(4)]
    L += [f'v_add_f32 v{HACC+r}, v{HACC+r}, v{HACC+16+r}' for r in range(16)]
    L += [f'v_cvt_pk_bf16_f32 v{HACC+i}, v{HACC+2*i}, v{HACC+2*i+1}' for i in range(8)]
    for k in range(2):
        L += [f'v_permlane32_swap_b32 v{HACC+4*k}, v{HACC+4*k+2}', f'v_permlane32_swap_b32 v{HACC+4*k+1}, v{HACC+4*k+3}']
    for k in range(2):
        e(f'buffer_store_dwordx4 {vr(HACC+4*k,4)}, v{VXO}, {srd(SOUT)}, 0 offen offset:{32*k}')
    if OPT['stamps']:
        L += [f's_mov_b32 s{sST+9}, s{T5}'] + stamp(8) + dump_stamps()
    e('s_endpgm')
    return L
def idle():
    L = ['L_idle:', 's_cmp_lg_u32 s2, 255', 's_cbranch_scc1 L_end', f's_cmp_lg_u32 s{sW}, 4', 's_cbranch_scc1 L_end']
    a, b = 200, 201
    L += [f'v_lshlrev_b32 v{a}, 7, v{LANE}', f'v_add_u32 v{a}, {WS_F2}, v{a}', f's_mov_b32 s{T0}, 0', 'L_idle1:']
    L += poll(a, 'L_polln', b)
    L += [f'v_add_u32 v{a}, 8192, v{a}', f's_add_u32 s{T0}, s{T0}, 1', f's_cmp_lt_u32 s{T0}, 4', 's_cbranch_scc1 L_idle1',
          f'v_mov_b32 v{b}, s{sTAG}', 's_mov_b64 exec, 1', f'buffer_store_dword v{b}, v{L16}, {srd(SWS)}, 0 offen sc1', 'L_end:', 's_endpgm']
    return L

def build():
    tr = Tracker()
    parts = []
    def sub(state, L):
        t = state.clone_state(); t.feed_all(L); parts.append(t); return t
    tr.feed_all(setup()); tr.feed_all(pass_A()); tr.feed_all(stamp(2))
    CR = SIDE[0]
    tr.feed_all(stats())
    tr.feed_all(caddr_head(UT[0]) + [f'ds_read_b32 v{CR}, v{UT[0]}'] + correct(ACCA[0], CR))
    tr.feed_all([f's_cmp_eq_u32 s{sISV}, 1', 's_cbranch_scc1 L_epiV'])
    parts.append(tr)
    t1 = sub(tr, epi_T(ACCA[0], 0) + ['s_branch L_epi1'])
    t2 = sub(tr, ['L_epiV:'] + epi_V(ACCA[0]) + [WaitLgkm0(), 's_nop 1'])
    j = t2.clone_state(); j.lg = []
    j.feed_all(['L_epi1:', f's_cmp_eq_u32 s{sISY}, 1', 's_cbranch_scc1 L_epiY'])
    parts.append(j)
    X = caddr_gu(UT[0]) + [f'ds_read_b32 v{CR}, v{UT[0]} offset:256', f'v_xor_b32 v{UT[0]}, 64, v{UT[0]}', f'ds_read_b32 v{CR+1}, v{UT[0]} offset:256']
    X += correct(ACCA[1], CR) + correct(ACCA[2], CR + 1) + epi_gu(ACCA[1], sFLA, 0) + epi_gu(ACCA[2], sFLA, 1) + ['s_branch L_epi2']
    tx = sub(j, X)
    Y = ['L_epiY:'] + caddr_head(UT[0]) + [f'ds_read_b32 v{CR}, v{UT[0]} offset:256', f'ds_read_b32 v{CR+1}, v{UT[0]} offset:512']
    Y += correct(ACCA[1], CR) + correct(ACCA[2], CR + 1) + epi_T(ACCA[1], 1) + epi_T(ACCA[2], 2) + ['s_nop 1']
    ty = sub(j, Y)
    k = tx.clone_state(); k.lg = []
    k.feed_all(['L_epi2:'] + pass_B(flag_at=10))
    E = caddr_gu(UT[0]) + [f'ds_read_b32 v{CR}, v{UT[0]} offset:768', f'v_xor_b32 v{UT[0]}, 64, v{UT[0]}', f'ds_read_b32 v{CR+1}, v{UT[0]} offset:768', WaitLgkm0(), 's_barrier']
    E += correct(ACCB[0], CR) + correct(ACCB[1], CR + 1) + epi_gu(ACCB[0], sCB, 0) + epi_gu(ACCB[1], sCB, 1)
    k.feed_all(E)
    k.feed_all([f's_cmp_ge_u32 s{sW}, 4', 's_cbranch_scc1 L_helper'])
    parts.append(k)
    ta = sub(k, ['s_setprio 3'] + attn_setup() + stamp(3) + attn_main() + [f's_mov_b64 s[{T4}:{T5}], -1'] + attn_finish())
    ts = Tracker(); ts.feed_all(attn_slow()); parts.append(ts)
    th = sub(k, ['L_helper:'] + helper())
    ti = Tracker(); ti.feed_all(idle()); parts.append(ti)
    body = '\n'.join(p.text() for p in parts)
    nops = sum(p.nops for p in parts)
    for p in parts:
        for n, t in p.log: print(f'nop {n}: {t}', file=sys.stderr)
    print('total nop states', nops, file=sys.stderr)
    hdr = f'''; fused layernorm + (MHA -> Wo) + (ReGLU FFN) + residual, one persistent launch (generated by gen/gen.py)
; @launch grid=(256,1,1) block=(512,1,1) lds=163840
.amdgcn_target "amdgcn-amd-amdhsa--gfx950"
.text
.globl {NAME}_kernel
.p2align 8
.type {NAME}_kernel,@function
{NAME}_kernel:
'''
    ftr = f'''
.section .rodata,"a"
.p2align 6
.amdhsa_kernel {NAME}_kernel
  .amdhsa_next_free_vgpr 256
  .amdhsa_next_free_sgpr 102
  .amdhsa_accum_offset 256
  .amdhsa_group_segment_fixed_size 0
  .amdhsa_kernarg_size 80
  .amdhsa_user_sgpr_count 2
  .amdhsa_user_sgpr_kernarg_segment_ptr 1
  .amdhsa_system_sgpr_workgroup_id_x 1
.end_amdhsa_kernel
'''
    return hdr + body + ftr

if __name__ == '__main__':
    open(sys.argv[1], 'w').write(build())
```

```python
import sys, math
from asmfw import *

NAME = 'parallel_sum__softmax_full_mha__glu_gated_reglu__prompt'
OPT = dict(stamps=False, fpoint=6, noside=0, nodma=0, nomfma=0, chunkst=0, nords=0, dspread=10, rt=0)
for a in sys.argv[2:]:
    k, v = a.split('=')
    OPT[k] = int(v)

WS_NONCE = 0
WS_F1 = 4096
WS_F2 = WS_F1 + 32768
WS_STAMP = WS_F2 + 32768
WS_QKV = 1 << 20
WS_O = WS_QKV + 48 * 131072
WS_H = WS_O + 64 * 32768
WS_END = WS_H + 64 * 112 * 1024
TAGK = 0x9E3779B9

LX = 0
LI = [49152, 73728, 98304]
LF0, LF1 = 122880, 139264
LMISC = 155648
LC = LMISC
LSQ = LMISC + 6144
BSLOT = [LF0, LF1, LX + 16384, LX + 32768, LI[0] + 8192, LI[1] + 8192, LI[2] + 8192]
LVT = LX
LSCR = 114688
RING = 28672

SX, SI0, SI1, SI2, SG, SU, SWS, SD, SWO, SOUT = 20, 24, 28, 32, 36, 40, 44, 48, 52, 56
sW, sRB, sCB, sTAG, sXCD, sIDX = 60, 61, 62, 63, 64, 65
sOX, sO0, sO1, sO2, sSTEP, sOB = 66, 67, 68, 69, 70, 71
sW2K, sW1K, sMASK, sP0, sM, sCG = 72, 73, 74, 75, 76, 77
sISY, sISV, sSCALE, sFLA = 78, 79, 80, 81
T0, T1, T2, T3, T4, T5 = 82, 83, 84, 85, 86, 87
sHI = 88
sST = 90
srd = lambda b: sr(b, 4)

ACCA = [0, 16, 32]; ACCB = [48, 64]
WF = [80, 92]
SIDE = [104, 108]; UT = [112, 113, 114, 115]
CACC = [116, 117, 118, 119, 120]; SQ = [121, 122]
RS2 = 123; AW = [124, 125, 126]; AS = 127
XF = 128
VG, VU = 240, 241; ABW = [242, 243]
L16, LANE, TMPV, RSTD = 244, 245, 246, 247
CB_ = 248; CA_ = 252
AX = [48, 49, 50, 51]; VX = [52, 53]; VI = [54, 55, 56]; APATCH = 57; PCONST = 58; ASX = 60; AS2 = 61

MF = 'v_mfma_f32_32x32x16_bf16'
def mfma(d, a, b, c=None):
    cs = '0' if c is None else vr(c, 16)
    return f'{MF} {vr(d,16)}, {vr(a,4)}, {vr(b,4)}, {cs}'

stamp_n = [0]
def stamp(i):
    if not OPT['stamps']: return []
    return [WaitLgkm0(), ('s_memrealtime' if OPT['rt'] else 's_memtime') + ' s[100:101]', 's_waitcnt lgkmcnt(0)', f's_mov_b32 s{sST+i}, s100']
def dump_stamps():
    if not OPT['stamps']: return []
    L = [f's_lshl_b32 s{T0}, s2, 3', f's_add_u32 s{T0}, s{T0}, s{sW}', f's_lshl_b32 s{T0}, s{T0}, 6', f's_add_u32 s{T0}, s{T0}, {WS_STAMP}',
         f's_memrealtime s[{T2}:{T3}]', 's_waitcnt lgkmcnt(0)']
    for i in range(10): L.append(f'v_mov_b32 v{208+i}, s{sST+i}')
    L += [f'v_mov_b32 v218, s{T2}', f'v_mov_b32 v219, s3', 'v_mov_b32 v220, 0',
          f'buffer_store_dwordx4 v[208:211], v220, {srd(SWS)}, s{T0} offen',
          f'buffer_store_dwordx4 v[212:215], v220, {srd(SWS)}, s{T0} offen offset:16',
          f'buffer_store_dwordx4 v[216:219], v220, {srd(SWS)}, s{T0} offen offset:32']
    return L

def dma(vaddr, s, soff, m0base, m0imm, tag):
    return [f's_add_u32 m0, s{m0base}, {m0imm}', Ins(f'buffer_load_dwordx4 v{vaddr}, {srd(s)}, s{soff} offen lds', tag)]

def dma_A(c):
    sl = c % 3; tag = f'A{c}'
    return [dma(VX[0], SX, sOX, sW2K, LX + sl * 16384, tag),
            dma(VX[1], SX, sOX, sW2K, LX + sl * 16384 + 1024, tag) + [f's_add_u32 s{sOX}, s{sOX}, 128'],
            dma(VI[0], SI0, sO0, sW1K, LI[0] + sl * 8192, tag) + [f's_add_u32 s{sO0}, s{sO0}, {64*2688}'],
            dma(VI[1], SI1, sO1, sW1K, LI[1] + sl * 8192, tag) + [f's_add_u32 s{sO1}, s{sO1}, s{sSTEP}'],
            dma(VI[2], SI2, sO2, sW1K, LI[2] + sl * 8192, tag) + [f's_add_u32 s{sO2}, s{sO2}, s{sSTEP}']]
def dma_B(c):
    tag = f'B{c}'
    return [dma(VG, SG, sOB, sW1K, BSLOT[c], tag), dma(VU, SU, sOB, sW1K, BSLOT[c] + 8192, tag) + [f's_add_u32 s{sOB}, s{sOB}, {64*3584}']]

def setup():
    L = []
    e = L.append
    e('s_cmp_ge_u32 s2, 256'); e('s_cbranch_scc1 L_end')
    if OPT['stamps']:
        e(f's_memrealtime s[{T2}:{T3}]'); e(('s_memrealtime' if OPT['rt'] else 's_memtime') + ' s[100:101]')
    e('s_load_dwordx4 s[4:7], s[0:1], 0')
    e('s_load_dwordx8 s[12:19], s[0:1], 32')
    e('s_load_dwordx2 s[10:11], s[0:1], 72')
    e('s_load_dwordx2 s[8:9], s[0:1], 16')
    e(f'v_lshrrev_b32 v1, 6, v0')
    e(f'v_and_b32 v{LANE}, 63, v0')
    e(f'v_readfirstlane_b32 s{sW}, v1')
    e(f's_and_b32 s{sXCD}, s2, 7'); e(f's_lshr_b32 s{sIDX}, s2, 3')
    e(f's_and_b32 s{T0}, s{sXCD}, 1'); e(f's_lshl_b32 s{T0}, s{T0}, 3'); e(f's_and_b32 s{T1}, s{sIDX}, 7'); e(f's_add_u32 s{sRB}, s{T0}, s{T1}')
    e(f's_lshr_b32 s{T0}, s{sXCD}, 1'); e(f's_lshl_b32 s{T0}, s{T0}, 2'); e(f's_lshr_b32 s{T1}, s{sIDX}, 3'); e(f's_add_u32 s{sCB}, s{T0}, s{T1}')
    tbl = sum(v << (4 * i) for i, v in enumerate([0, 5, 8, 13, 3, 4, 11, 12]))
    e(f's_lshl_b32 s{T0}, s{sCB}, 2'); e(f's_lshr_b32 s{T0}, {tbl:#x}, s{T0}'); e(f's_and_b32 s{T0}, s{T0}, 15')
    e(f's_add_u32 s{T1}, s{sCB}, 8'); e(f's_cmp_ge_u32 s{sCB}, 8'); e(f's_cselect_b32 s{sP0}, s{T1}, s{T0}'); e(f's_cselect_b32 s{sISV}, 1, 0')
    e(f's_add_u32 s{sFLA}, s{sCB}, 12')
    e(f's_lshl_b32 s{sW2K}, s{sW}, 11'); e(f's_lshl_b32 s{sW1K}, s{sW}, 10')
    e(f's_mov_b32 s{sMASK}, 0xffff0000')
    e(f's_lshr_b32 s{sCG}, s{sW}, 2')
    e(f's_and_b32 s{T0}, s{sW}, 3'); e(f's_lshl_b32 s{sM}, s{sRB}, 2'); e(f's_add_u32 s{sM}, s{sM}, s{T0}')
    e(f's_mul_i32 s{sOX}, s{sRB}, {128*896}')
    e(f's_mul_i32 s{sO0}, s{sP0}, 112')
    e(f's_lshl_b32 s{sOB}, s{sCB}, 7')
    e(f's_lshl_b32 s{T0}, s{sFLA}, 7'); e(f's_add_u32 s{T1}, s{sO0}, 112'); e(f's_add_u32 s{T4}, s{sO0}, 224')
    e(f's_cmp_lt_u32 s{sCB}, 4')
    e(f's_cselect_b32 s{sISY}, 1, 0')
    e(f's_cselect_b32 s{sO1}, s{T1}, s{T0}'); e(f's_cselect_b32 s{sO2}, s{T4}, s{T0}')
    e(f's_mov_b32 s{T0}, {64*3584}'); e(f's_cselect_b32 s{sSTEP}, {64*2688}, s{T0}')
    e(f's_cselect_b64 vcc, -1, 0')
    e(f's_mov_b32 s{sHI}, 0'); e(f's_mov_b32 s{sHI+1}, -1')
    e(f'v_lshrrev_b32 v2, 3, v{LANE}'); e(f'v_and_b32 v3, 7, v{LANE}')
    e(f'v_lshlrev_b32 v{L16}, 4, v{LANE}')
    e(f'v_lshrrev_b32 v4, 1, v2'); e(f'v_xor_b32 v4, v4, v3'); e(f'v_lshlrev_b32 v4, 4, v4')
    e(f's_lshl_b32 s{T0}, s{sW}, 4'); e(f'v_add_u32 v5, s{T0}, v2'); e(f'v_mul_u32_u24 v5, 896, v5')
    e(f'v_add_u32 v{VX[0]}, v5, v4'); e(f'v_xor_b32 v4, 64, v4'); e(f'v_add_u32 v5, {8*896}, v5'); e(f'v_add_u32 v{VX[1]}, v5, v4')
    e(f'v_lshlrev_b32 v4, 1, v2'); e(f'v_and_b32 v4, 4, v4'); e(f'v_xor_b32 v4, v4, v3')
    e(f's_lshl_b32 s{T0}, s{sW}, 3'); e(f'v_add_u32 v5, s{T0}, v2')
    e(f'v_mul_u32_u24 v6, 3584, v5'); e(f'v_lshlrev_b32 v7, 4, v4'); e(f'v_add_u32 v{VG}, v6, v7')
    e(f'v_xor_b32 v7, 32, v7'); e(f'v_add_u32 v{VU}, v6, v7')
    e(f'v_mul_u32_u24 v6, 2688, v5'); e(f'v_lshrrev_b32 v7, 2, v4'); e(f'v_mul_u32_u24 v7, 56, v7'); e(f'v_add_u32 v6, v6, v7')
    e(f'v_and_b32 v7, 3, v4'); e(f'v_lshlrev_b32 v7, 4, v7'); e(f'v_add_u32 v{VI[0]}, v6, v7')
    e(f'v_cndmask_b32 v{VI[1]}, v{VG}, v{VI[0]}, vcc'); e(f'v_cndmask_b32 v{VI[2]}, v{VU}, v{VI[0]}, vcc')
    e('s_waitcnt lgkmcnt(0)')
    if OPT['stamps']:
        e(f's_mov_b32 s3, s{T2}'); e(f's_mov_b32 s{sST}, s100')
        for i in range(1, 10): e(f's_mov_b32 s{sST+i}, 0')
    e(f's_load_dword s{sTAG}, s[10:11], {WS_NONCE}')
    def mk(b, p, n):
        e(f's_mov_b32 s{b}, s{p}'); e(f's_mov_b32 s{b+1}, s{p+1}'); e(f's_mov_b32 s{b+2}, {n}'); e(f's_mov_b32 s{b+3}, 0x20000')
    mk(SX, 4, 2048 * 896); mk(SI0, 6, 448 * 2688)
    e(f's_cmp_lt_u32 s{sCB}, 4')
    for b, p in ((SI1, 12), (SI2, 14)):
        e(f's_cselect_b32 s{b}, s6, s{p}'); e(f's_cselect_b32 s{b+1}, s7, s{p+1}')
        e(f's_mov_b32 s{T0}, {448*3584}'); e(f's_cselect_b32 s{b+2}, {448*2688}, s{T0}'); e(f's_mov_b32 s{b+3}, 0x20000')
    for g in dma_A(0): L.extend(g)
    mk(SG, 12, 448 * 3584); mk(SU, 14, 448 * 3584); mk(SWS, 10, WS_END); mk(SD, 16, 1792 * 896); mk(SWO, 8, 448 * 896); mk(SOUT, 18, 2048 * 896)
    e(f'v_and_b32 v2, 31, v{LANE}'); e(f'v_lshrrev_b32 v3, 5, v{LANE}')
    e(f'v_bfe_u32 v4, v{LANE}, 1, 3'); e(f'v_xor_b32 v4, v4, v3'); e(f'v_lshlrev_b32 v4, 4, v4')
    e(f's_and_b32 s{T0}, s{sW}, 3'); e(f's_lshl_b32 s{T0}, s{T0}, 12')
    e(f'v_lshl_add_u32 v4, v2, 7, v4'); e(f'v_add_u32 v{AX[0]}, s{T0}, v4')
    for s in (1, 2, 3): e(f'v_xor_b32 v{AX[s]}, {32*s}, v{AX[0]}')
    e(f'v_bfe_u32 v4, v{LANE}, 2, 2')
    e(f'v_bfe_u32 v5, v{LANE}, 3, 1'); e(f'v_lshlrev_b32 v5, 6, v5')
    e(f'v_and_b32 v6, 3, v{LANE}'); e(f'v_lshlrev_b32 v6, 3, v6')
    e(f'v_or_b32 v5, v5, v6'); e(f'v_lshl_add_u32 v5, v4, 7, v5')
    e(f'v_lshrrev_b32 v6, 4, v{LANE}'); e(f'v_lshlrev_b32 v6, 5, v6'); e(f'v_xor_b32 v6, v6, v5'); e(f'v_add_u32 v{AS}, s{sW1K}, v6')
    e(f'v_add_u32 v{AS2}, {LI[2]}, v{AS}'); e(f'v_add_u32 v{AS}, {LI[0]}, v{AS}')
    e(f'v_lshl_add_u32 v5, v3, 10, v5')
    e(f'v_bfe_u32 v6, v{LANE}, 4, 1')
    e(f'v_lshlrev_b32 v7, 5, v6'); e(f'v_xor_b32 v5, v5, v7')
    e(f's_lshl_b32 s{T0}, s{sCG}, 6'); e(f'v_xor_b32 v5, s{T0}, v5')
    e(f'v_add_u32 v{AW[0]}, {LI[0]}, v5')
    e(f'v_lshl_add_u32 v{ABW[0]}, v6, 13, v5'); e(f'v_add_u32 v{ABW[0]}, {LI[1]+8192}, v{ABW[0]}'); e(f'v_xor_b32 v{ABW[1]}, 32, v{ABW[0]}')
    e(f'v_mul_u32_u24 v7, {LI[2]-LI[1]}, v6'); e(f'v_add_u32 v7, v7, v5'); e(f'v_add_u32 v7, {LI[1]}, v7'); e(f'v_xor_b32 v8, 32, v7')
    e(f'v_add_u32 v9, {LI[1]}, v5'); e(f'v_add_u32 v10, {LI[2]}, v5')
    e(f'v_cndmask_b32 v{AW[1]}, v7, v9, vcc'); e(f'v_cndmask_b32 v{AW[2]}, v8, v10, vcc')
    e(f'v_and_b32 v4, 7, v{LANE}'); e(f'v_bfe_u32 v5, v{LANE}, 3, 1'); e(f'v_bfe_u32 v6, v{LANE}, 1, 1'); e(f'v_xor_b32 v5, v5, v6')
    e(f'v_lshlrev_b32 v5, 6, v5'); e(f'v_lshl_add_u32 v5, v4, 7, v5'); e(f'v_add_u32 v5, s{sW1K}, v5'); e(f'v_add_u32 v{APATCH}, {LI[0]+56}, v5')
    e(f'v_mov_b32 v{PCONST}, 0x3f80'); e(f'v_mov_b32 v{PCONST+1}, 0')
    e(f'v_add_u32 v{ASX}, s{sW2K}, v{L16}')
    for r in CACC + SQ: e(f'v_mov_b32 v{r}, 0')
    for r in (CB_ + 2, CB_ + 3, CA_ + 2, CA_ + 3): e(f'v_mov_b32 v{r}, 0')
    qs = (28 ** -0.5) * math.log2(math.e)
    import struct
    qsb = struct.unpack('<I', struct.pack('<f', qs))[0]
    e(f's_cmp_lt_u32 s{sP0}, 8'); e(f's_cselect_b32 s{sSCALE}, {qsb:#x}, 1.0')
    for g in dma_A(1): L.extend(g)
    e('s_waitcnt lgkmcnt(0)')
    e(f's_add_u32 s{sTAG}, s{sTAG}, {TAGK:#x}')
    return L

def patch(c):
    return ['s_mov_b64 exec, 0xffff', f'ds_write_b64 v{APATCH}, v[{PCONST}:{PCONST+1}] offset:{(c%3)*8192}', 's_mov_b64 exec, -1']

def unit_sum(src, acc):
    L = []
    for i in range(4):
        a, b = UT[(2*i) % 4], UT[(2*i + 1) % 4]
        L += [f'v_and_b32 v{a}, s{sMASK}, v{src+i}', f'v_lshlrev_b32 v{b}, 16, v{src+i}', f'v_add_f32 v{acc}, v{acc}, v{a}', f'v_add_f32 v{acc}, v{acc}, v{b}']
    return L
def unit_sq(src, acc):
    L = []
    for i in range(4):
        a, b = UT[(2*i) % 4], UT[(2*i + 1) % 4]
        L += [f'v_and_b32 v{a}, s{sMASK}, v{src+i}', f'v_lshlrev_b32 v{b}, 16, v{src+i}', f'v_fmac_f32 v{acc}, v{a}, v{a}', f'v_fmac_f32 v{acc}, v{b}, v{b}']
    return L
def side_stream(units):
    L = []
    L += units[0][0](SIDE[0])
    for u in range(len(units)):
        if u + 1 < len(units): L += units[u + 1][0](SIDE[(u + 1) & 1])
        L += units[u][1](SIDE[u & 1])
    return L
def side_A(c):
    sl = c % 3; U = []
    for I in range(3):
        off = (LI[I] - LI[0] if I < 2 else 0) + sl * 8192; ar = AS if I < 2 else AS2
        U.append((lambda b, off=off, ar=ar: [f'ds_read_b64_tr_b16 v[{b}:{b+1}], v{ar} offset:{off}', f'ds_read_b64_tr_b16 v[{b+2}:{b+3}], v{ar} offset:{off+512}'],
                  lambda b, I=I: unit_sum(b, CACC[I])))
    for a in range(2):
        off = LX + sl * 16384 + a * 1024
        U.append((lambda b, off=off: [f'ds_read_b128 v[{b}:{b+3}], v{ASX} offset:{off}'], lambda b, a=a: unit_sq(b, SQ[a])))
    return side_stream(U)

def reads_A(ks):
    c, s = ks >> 2, ks & 3; sl = c % 3; wf = WF[ks & 1]
    x = [f'ds_read_b128 {vr(XF+4*ks,4)}, v{AX[s]} offset:{LX + sl*16384}']
    w = []
    for t in range(3):
        o = sl * 8192 + s * 2048
        w.append([f'ds_read_b64_tr_b16 {vr(wf+4*t,2)}, v{AW[t]} offset:{o}', f'ds_read_b64_tr_b16 {vr(wf+4*t+2,2)}, v{AW[t]} offset:{o+512}'])
    return [x + w[0], w[1], w[2]]

BWIN_HI = LI[1] + 8192
def bwin(c): return BWIN_HI if BSLOT[c] >= BWIN_HI else 0
def reads_B(ks):
    c, s = ks >> 2, ks & 3; wf = WF[ks & 1]
    w = []
    pre = []
    if s == 0 and c > 0 and bwin(c) != bwin(c - 1):
        d = bwin(c) - bwin(c - 1)
        op = 'v_add_u32' if d > 0 else 'v_subrev_u32'
        pre = [f'{op} v{ABW[t]}, {abs(d)}, v{ABW[t]}' for t in range(2)]
    for t in range(2):
        o = BSLOT[c] - bwin(c) + s * 2048
        w.append([f'ds_read_b64_tr_b16 {vr(wf+4*t,2)}, v{ABW[t]} offset:{o}', f'ds_read_b64_tr_b16 {vr(wf+4*t+2,2)}, v{ABW[t]} offset:{o+512}'])
    w[0] = pre + w[0]
    return w
as_base = [LI[0]]
def side_B(c):
    U = []
    d = BSLOT[c] - as_base[0]; as_base[0] = BSLOT[c]
    op = 'v_add_u32' if d > 0 else 'v_subrev_u32'
    for I in range(2):
        off = I * 8192
        U.append((lambda b, off=off: [f'ds_read_b64_tr_b16 v[{b}:{b+1}], v{AS} offset:{off}', f'ds_read_b64_tr_b16 v[{b+2}:{b+3}], v{AS} offset:{off+512}'],
                  lambda b, I=I: unit_sum(b, CACC[3 + I])))
    return [f'{op} v{AS}, {abs(d)}, v{AS}'] + side_stream(U)

def split(L, n):
    return [L[(len(L) * i) // n:(len(L) * (i + 1)) // n] for i in range(n)]

def cadd(idx):
    L = [f's_lshl_b32 s{T0}, s{sW}, 2', f's_add_u32 s{T0}, s{T0}, {LC}', f'v_lshl_add_u32 v{UT[0]}, v{LANE}, 5, s{T0}']
    for i in idx: L.append(f'ds_write_b32 v{UT[0]}, v{CACC[i]} offset:{(i%3)*2048}')
    return L

def pass_A():
    L = []
    L += [WaitTag('A0')] + patch(0) + [WaitLgkm0(), 's_barrier']
    L += stamp(1)
    for g in reads_A(0): L += g
    fill = {ks: [] for ks in range(28)}
    for c in range(7):
        ksl = [k for k in range(4*c - 1, 4*c + 3) if k >= 0]
        for k, part in zip(ksl, split(side_A(c), len(ksl))): fill[k] += ([] if OPT['noside'] else part)
    fin = cadd([0, 1, 2])
    for a in range(2):
        r = SQ[a]
        fin += [f'v_add_f32_dpp v{r}, v{r}, v{r} quad_perm:[1,0,3,2] row_mask:0xf bank_mask:0xf',
                f'v_add_f32_dpp v{r}, v{r}, v{r} quad_perm:[2,3,0,1] row_mask:0xf bank_mask:0xf',
                f'v_add_f32_dpp v{r}, v{r}, v{r} row_half_mirror row_mask:0xf bank_mask:0xf']
    fin += [f'v_lshrrev_b32 v{UT[1]}, 3, v{LANE}', f's_lshl_b32 s{T0}, s{sW}, 6', f's_add_u32 s{T0}, s{T0}, {LSQ}',
            f'v_lshl_add_u32 v{UT[1]}, v{UT[1]}, 2, s{T0}',
            f'ds_write_b32 v{UT[1]}, v{SQ[0]}', f'ds_write_b32 v{UT[1]}, v{SQ[1]} offset:32']
    fill[26] += fin
    dslot = {i: [] for i in range(84)}
    def spread(groups, first, nslots):
        for i, g in enumerate(groups): dslot[first + (i * nslots) // len(groups)] += g
    NS = OPT['dspread']
    spread(dma_A(2), 0, min(NS, 9))
    for c in range(4): spread(dma_A(c + 3), 3 * (4*c + 3), NS)
    spread(dma_B(0) + dma_B(1) + dma_B(2), 3 * 19, 12)
    spread(dma_B(3) + dma_B(4) + dma_B(5) + dma_B(6), 3 * 23, 15)
    for ks in range(28):
        c, s = ks >> 2, ks & 3
        pre = []
        if s == 2:
            if c < 6: pre = [WaitTag(f'A{c+1}')] + patch(c + 1)
        if s == 3:
            if c == 6: pre = [WaitTag('B0', 'B1', 'B2')]
            pre += [WaitLgkm0(), 's_barrier']
        if OPT['chunkst'] and s == 3: pre += stamp(3 + c)
        nxt = reads_A(ks + 1) if ks < 27 and not OPT['nords'] else [[], [], []]
        f = split(fill[ks], 3)
        L += pre
        for t in range(3):
            d = [] if OPT['nodma'] else dslot[3*ks + t]
            L += d[:1] + nxt[t]
            if not OPT['nomfma']: L.append(mfma(ACCA[t], WF[ks & 1] + 4*t, XF + 4*ks, None if ks == 0 else ACCA[t]))
            L += d[1:] + f[t]
    return L

def stats():
    a, b, c, d = UT
    L = [f'v_and_b32 v{a}, 31, v{LANE}', f's_and_b32 s{T0}, s{sW}, 3', f's_lshl_b32 s{T0}, s{T0}, 7', f's_add_u32 s{T0}, s{T0}, {LSQ}',
         f'v_lshl_add_u32 v{a}, v{a}, 2, s{T0}', f'ds_read_b32 v{RS2}, v{a}',
         f'v_mov_b32 v{a}, v{ACCA[0]+12}', f'v_mov_b32 v{b}, v{ACCA[0]+12}',
         f'v_permlane32_swap_b32 v{a}, v{b}',
         f'v_mul_f32 v{b}, {f2u(-1.0/448):#x}, v{b}',
         f'v_mul_f32 v{RS2}, {f2u(1.0/448):#x}, v{RS2}',
         f'v_fma_f32 v{RS2}, -v{b}, v{b}, v{RS2}',
         f'v_max_f32 v{RS2}, 0, v{RS2}',
         f'v_add_f32 v{RS2}, {f2u(1e-5):#x}, v{RS2}',
         f'v_rsq_f32 v{RSTD}, v{RS2}',
         f'v_and_b32 v{c}, s{sMASK}, v{b}', f'v_sub_f32 v{d}, v{b}, v{c}',
         f'v_mul_f32 v{RS2}, v{RSTD}, v{RSTD}',
         f'v_cvt_pk_bf16_f32 v{CB_}, v{c}, v{c}', f'v_cvt_pk_bf16_f32 v{CB_+1}, v{d}, v{CB_+2}',
         f'v_mul_f32 v{RSTD}, s{sSCALE}, v{RSTD}']
    return L
import struct
def f2u(x): return struct.unpack('<I', struct.pack('<f', x))[0]

def caddr_head(dst):
    return [f'v_and_b32 v{dst}, 31, v{LANE}', f's_lshl_b32 s{T0}, s{sCG}, 10', f's_add_u32 s{T0}, s{T0}, {LC}', f'v_lshl_add_u32 v{dst}, v{dst}, 5, s{T0}',
            f'v_lshrrev_b32 v{TMPV}, 5, v{LANE}', f'v_lshl_add_u32 v{dst}, v{TMPV}, 4, v{dst}']
def caddr_gu(dst):
    return caddr_head(dst) + [f'v_bfe_u32 v{TMPV}, v{LANE}, 4, 1', f'v_lshl_add_u32 v{dst}, v{TMPV}, 11, v{dst}']
def cread(dst, addr, off):
    return [f'ds_read_b128 {vr(dst,4)}, v{addr} offset:{off}']
def csum(r):
    return [f'v_add_f32 v{r}, v{r}, v{r+1}', f'v_add_f32 v{r+2}, v{r+2}, v{r+3}', f'v_add_f32 v{r}, v{r}, v{r+2}']
def correct(acc, creg):
    a, b = UT[2], UT[3]
    return csum(creg) + [f'v_and_b32 v{a}, s{sMASK}, v{creg}', f'v_sub_f32 v{b}, v{creg}, v{a}', f'v_lshrrev_b32 v{CA_+1}, 16, v{creg}',
            f'v_cvt_pk_bf16_f32 v{CA_}, v{a}, v{b}', mfma(acc, CA_, CB_, acc)]
def epi_head_pack(acc, isv):
    L = [f'v_mul_f32 v{acc+i}, v{RSTD}, v{acc+i}' for i in range(16)]
    L += [f'v_cvt_pk_bf16_f32 v{acc+i}, v{acc+2*i}, v{acc+2*i+1}' for i in range(8)]
    if isv:
        L += [f'v_mov_b32 v{acc+8}, 0x3f80', f'v_cndmask_b32 v{acc+6}, v{acc+6}, v{acc+8}, s[{sHI}:{sHI+1}]']
    else:
        L += [f'v_cndmask_b32 v{acc+6}, v{acc+6}, 0, s[{sHI}:{sHI+1}]']
    L += [f'v_cndmask_b32 v{acc+7}, v{acc+7}, 0, s[{sHI}:{sHI+1}]']
    return L
def head_soff(I):
    return [f's_add_u32 s{T0}, s{sP0}, {I}', f's_lshl_b32 s{T0}, s{T0}, 1', f's_add_u32 s{T0}, s{T0}, s{sCG}',
            f's_lshl_b32 s{T1}, s{T0}, 17', f's_lshl_b32 s{T2}, s{sM}, 11', f's_add_u32 s{T1}, s{T1}, s{T2}', f's_add_u32 s{T1}, s{T1}, {WS_QKV}',
            f's_lshl_b32 s{T2}, s{sM}, 4', f's_add_u32 s{T2}, s{T2}, s{T0}', f's_lshl_b32 s{T2}, s{T2}, 11', f's_add_u32 s{T2}, s{T2}, {WS_O}',
            f's_cmp_lt_u32 s{T0}, 16', f's_cselect_b32 s{T2}, s{T2}, {WS_END}']
def store4(src, soff, imm=0, tag='st'):
    return Ins(f'buffer_store_dwordx4 {vr(src,4)}, v{L16}, {srd(SWS)}, s{soff} offen offset:{imm} sc1', tag)
def epi_T(acc, I):
    L = epi_head_pack(acc, False) + head_soff(I)
    L += [f'v_mov_b32 v{acc+8+i}, -1' for i in range(4)]
    L += [store4(acc, T1, 0), store4(acc + 4, T1, 1024), store4(acc + 8, T2, 0), store4(acc + 8, T2, 1024)]
    return L
def epi_V(acc):
    L = epi_head_pack(acc, True) + head_soff(0)
    a, b, c, d = UT
    L += [f'v_and_b32 v{a}, 31, v{LANE}', f'v_lshrrev_b32 v{b}, 5, v{LANE}', f'v_bfe_u32 v{c}, v{LANE}, 1, 3', f'v_xor_b32 v{b}, v{b}, v{c}',
          f'v_lshlrev_b32 v{b}, 3, v{b}', f'v_lshl_add_u32 v{a}, v{a}, 6, v{b}', f'v_add_u32 v{a}, s{sW2K}, v{a}']
    for i in range(4):
        L += [f'v_xor_b32 v{b}, {16*i}, v{a}', f'ds_write_b64 v{b}, {vr(acc+2*i,2)} offset:{LVT}']
    L += [f'v_bfe_u32 v{a}, v{LANE}, 2, 2', f'v_lshrrev_b32 v{b}, 5, v{LANE}', f'v_lshl_add_u32 v{a}, v{b}, 2, v{a}',
          f'v_lshrrev_b32 v{b}, 1, v{a}',
          f'v_bfe_u32 v{c}, v{LANE}, 4, 1', f'v_and_b32 v{d}, 3, v{LANE}', f'v_lshl_add_u32 v{c}, v{c}, 2, v{d}',
          f'v_xor_b32 v{b}, v{b}, v{c}', f'v_lshlrev_b32 v{b}, 3, v{b}', f'v_lshl_add_u32 v{a}, v{a}, 6, v{b}', f'v_add_u32 v{a}, s{sW2K}, v{a}',
          f'v_xor_b32 v{b}, 32, v{a}', WaitLgkm0()]
    for i in range(4):
        L.append(f'ds_read_b64_tr_b16 {vr(acc+8+2*i,2)}, v{b if i & 1 else a} offset:{LVT + 512*i}')
    L += [store4(acc + 8, T1, 0), store4(acc + 12, T1, 1024)]
    return L
def epi_gu(acc, fl, j):
    L = []
    for i in range(8):
        L += [f'v_max_f32 v{acc+i}, 0, v{acc+i}', f'v_mul_f32 v{acc+8+i}, v{RS2}, v{acc+8+i}', f'v_mul_f32 v{acc+i}, v{acc+i}, v{acc+8+i}']
    L += [f'v_cvt_pk_bf16_f32 v{acc+i}, v{acc+2*i}, v{acc+2*i+1}' for i in range(4)]
    L += [f's_mul_i32 s{T1}, s{sM}, 28', f's_add_u32 s{T1}, s{T1}, s{fl}', f's_lshl_b32 s{T1}, s{T1}, 1', f's_add_u32 s{T1}, s{T1}, s{sCG}',
          f's_lshl_b32 s{T1}, s{T1}, 11', f's_add_u32 s{T1}, s{T1}, {WS_H}', store4(acc, T1, 1024 * j)]
    return L
def set_flag(base):
    return [f's_lshl_b32 s{T0}, s{sRB}, 4', f's_add_u32 s{T0}, s{T0}, s{sCB}', f's_lshl_b32 s{T0}, s{T0}, 5', f's_add_u32 s{T0}, s{T0}, s{sW}',
            f's_lshl_b32 s{T0}, s{T0}, 2', f's_add_u32 s{T0}, s{T0}, {base}',
            f'v_mov_b32 v{TMPV}, s{sTAG}', 's_mov_b64 exec, 1',
            Ins(f'buffer_store_dword v{TMPV}, v{L16}, {srd(SWS)}, s{T0} offen sc1', 'flag'), 's_mov_b64 exec, -1']

def pass_B(flag_at):
    L = []
    for g in reads_B(0): L += g
    fill = {ks: [] for ks in range(28)}
    for c in range(7):
        ksl = [k for k in range(4*c - 1, 4*c + 3) if k >= 0]
        for k, part in zip(ksl, split(side_B(c), len(ksl))): fill[k] += part
    fill[26] += cadd([3, 4])
    for ks in range(28):
        c, s = ks >> 2, ks & 3
        pre = []
        if ks == flag_at: pre += [WaitTag('st')] + set_flag(WS_F1)
        if s == 3 and c == 2: pre += [WaitTag('B3', 'B4', 'B5', 'B6'), 's_barrier']
        if s == 3 and c == 6: pre += [WaitLgkm0(), 's_barrier']
        nxt = reads_B(ks + 1) if ks < 27 else [[], []]
        f = split(fill[ks], 2)
        L += pre
        for t in range(2):
            L += nxt[t]
            L.append(mfma(ACCB[t], WF[ks & 1] + 4*t, XF + 4*ks, None if ks == 0 else ACCB[t]))
            L += f[t]
    return L

QF = 128
OA = 0
NB = 4
KF = [64, 72, 80, 88]; VF = [96, 104, 112, 120]
SB = [184, 204]
PB = [160, 168]
EB = 176
def poll(addr, label, tmp):
    return [f's_mov_b32 s{T5}, 0', f'{label}:',
            f'buffer_load_dword v{tmp}, v{addr}, {srd(SWS)}, 0 offen sc1', f's_add_u32 s{T5}, s{T5}, 1', 's_waitcnt vmcnt(0)',
            f'v_cmp_ne_u32 vcc, s{sTAG}, v{tmp}', f's_cmp_lt_u32 s{T5}, 100000', f's_cselect_b64 s[{T2}:{T3}], -1, 0',
            f's_and_b64 vcc, vcc, s[{T2}:{T3}]', f's_cbranch_vccnz {label}']
sHD, sQB, sKO, sVO = 66, 67, 68, 69
def ld4(dst, soff, imm, tag=None):
    return Ins(f'buffer_load_dwordx4 {vr(dst,4)}, v{L16}, {srd(SWS)}, s{soff} offen offset:{imm} sc1', tag)
def attn_setup():
    L = []; e = L.append
    e(f's_lshr_b32 s{T0}, s{sIDX}, 4'); e(f's_lshl_b32 s{sHD}, s{sXCD}, 1'); e(f's_add_u32 s{sHD}, s{sHD}, s{T0}'); e(f's_and_b32 s{sQB}, s{sIDX}, 15')
    tbl = sum(v << (4 * i) for i, v in enumerate([0, 0, 0, 4, 5, 1, 1, 1]))
    e(f's_lshl_b32 s{T1}, s{sXCD}, 2'); e(f's_lshr_b32 s{T1}, {tbl:#x}, s{T1}'); e(f's_and_b32 s{T1}, s{T1}, 15')
    a, b, c, d = 200, 201, 202, 203
    e(f'v_and_b32 v{a}, 15, v{LANE}'); e(f's_lshl_b32 s{T2}, s{sW}, 4'); e(f'v_add_u32 v{a}, s{T2}, v{a}')
    e(f'v_and_b32 v{b}, 3, v{LANE}'); e(f's_lshl_b32 s{T2}, s{sQB}, 2'); e(f'v_add_u32 v{b}, s{T2}, v{b}')
    e(f'v_cndmask_b32 v{a}, v{a}, v{b}, s[{sHI}:{sHI+1}]')
    e(f's_add_u32 s{T2}, s{T1}, 2'); e(f's_add_u32 s{T3}, s{sXCD}, 8')
    e(f'v_mov_b32 v{b}, s{T2}'); e(f'v_mov_b32 v{c}, s{T3}'); e(f'v_cmp_lt_u32 vcc, 15, v{LANE}'); e(f'v_cndmask_b32 v{b}, v{b}, v{c}, vcc')
    e(f'v_mov_b32 v{c}, s{T1}'); e(f'v_cndmask_b32 v{b}, v{b}, v{c}, s[{sHI}:{sHI+1}]')
    e(f'v_lshrrev_b32 v{c}, 2, v{a}'); e(f'v_lshl_add_u32 v{b}, v{c}, 4, v{b}'); e(f'v_lshlrev_b32 v{b}, 7, v{b}')
    e(f'v_and_b32 v{a}, 3, v{a}'); e(f'v_lshl_add_u32 v{a}, v{a}, 2, v{b}')
    e(f's_lshl_b32 s{T0}, s{T0}, 4'); e(f's_add_u32 s{T0}, s{T0}, {WS_F1}'); e(f'v_add_u32 v{a}, s{T0}, v{a}')
    L += [Sync()] + set_flag(WS_F2) + stamp(6) + poll(a, 'L_pollqkv', b)
    e(f's_lshl_b32 s{T0}, s{sHD}, 17'); e(f's_add_u32 s{T0}, s{T0}, {WS_QKV}')
    e(f's_lshl_b32 s{T1}, s{sW}, 15'); e(f's_add_u32 s{sKO}, s{T0}, s{T1}'); e(f's_add_u32 s{sKO}, s{sKO}, {16*131072}'); e(f's_add_u32 s{sVO}, s{sKO}, {16*131072}')
    e(f's_lshl_b32 s{T1}, s{sQB}, 13'); e(f's_add_u32 s{T0}, s{T0}, s{T1}')
    L += [ld4(KF[0], sKO, 0), ld4(KF[0] + 4, sKO, 1024)]
    for j in range(4):
        e(f's_add_u32 s{T1}, s{sW}, {1+j}'); e(f's_and_b32 s{T1}, s{T1}, 3'); e(f's_lshl_b32 s{T1}, s{T1}, 11'); e(f's_add_u32 s{T1}, s{T1}, s{T0}')
        L += [ld4(QF + 8*j, T1, 0), ld4(QF + 8*j + 4, T1, 1024)]
    L += [ld4(VF[0], sVO, 0), ld4(VF[0] + 4, sVO, 1024)]
    for kt in range(1, NB - 1):
        imm = 2048 * (kt & 1)
        if imm == 0: L += [f's_add_u32 s{sKO}, s{sKO}, 4096', f's_add_u32 s{sVO}, s{sVO}, 4096']
        L += [ld4(KF[kt], sKO, imm), ld4(KF[kt] + 4, sKO, imm + 1024), ld4(VF[kt], sVO, imm), ld4(VF[kt] + 4, sVO, imm + 1024)]
    return L
def attn_main():
    L = []
    NT = 64
    K = lambda i: KF[(i >> 2) % NB]; V = lambda i: VF[(i >> 2) % NB]
    Q = lambda i: QF + 8 * (i & 3); O = lambda i: OA + 16 * (i & 3)
    S = lambda i: SB[i & 1]; P = lambda i: PB[i & 1]
    qka = lambda i: mfma(S(i), K(i), Q(i), None)
    qkb = lambda i: mfma(S(i), K(i) + 4, Q(i) + 4, S(i))
    pva = lambda i: mfma(O(i), V(i), P(i), None if i < 4 else O(i))
    pvb = lambda i: mfma(O(i), V(i) + 4, P(i) + 4, O(i))
    ex = lambda i, g: [f'v_exp_f32 v{EB + (4*g + j) % 8}, v{S(i) + 4*g + j}' for j in range(4)]
    cv = lambda i, g: [f'v_cvt_pk_bf16_f32 v{P(i) + 2*g + j}, v{EB + (4*g + 2*j) % 8}, v{EB + (4*g + 2*j + 1) % 8}' for j in range(2)]
    AR = 200
    pre = [f's_add_u32 s{T0}, s{sW}, 1']
    wr = {}
    for j in range(3):
        pre += [f's_add_u32 s{T1}, s{T0}, {j}', f's_and_b32 s{T1}, s{T1}, 3', f's_mul_i32 s{T1}, s{T1}, {3*4096}', f's_add_u32 s{T1}, s{T1}, {LSCR + j*4096}',
                f'v_add_u32 v{AR+j}, s{T1}, v{L16}']
    pre += [f's_mul_i32 s{T1}, s{sW}, {3*4096}', f's_add_u32 s{T1}, s{T1}, {LSCR}', f'v_add_u32 v{AR+3}, s{T1}, v{L16}']
    L += pre
    L += [qka(0), qkb(0)]
    for i in range(NT + 1):
        kt, j = i >> 2, i & 3
        extra = [[], [], [], []]
        if i < NT and kt + NB - 1 < 16:
            nb = (kt + NB - 1) % NB; imm = 2048 * ((kt + NB - 1) & 1)
            adv = lambda s: [f's_add_u32 s{s}, s{s}, 4096'] if imm == 0 else []
            if j == 0: extra[0] = adv(sKO) + [ld4(KF[nb], sKO, imm)]; extra[2] = [ld4(KF[nb] + 4, sKO, imm + 1024)]
            if j == 1: extra[0] = adv(sVO) + [ld4(VF[nb], sVO, imm)]; extra[2] = [ld4(VF[nb] + 4, sVO, imm + 1024)]
        if i + 1 < NT: L.append(qka(i + 1))
        if i > 0: L += cv(i - 1, 3)
        if i < NT: L += ex(i, 0)
        L += extra[0]
        if i + 1 < NT: L.append(qkb(i + 1))
        if i < NT: L += cv(i, 0) + ex(i, 1)
        L += extra[1]
        if i > 0: L.append(pvb(i - 1))
        if i < NT: L += cv(i, 1) + ex(i, 2)
        L += extra[2]
        if i < NT:
            L.append(pva(i)); L += cv(i, 2) + ex(i, 3)
        if i - 1 >= NT - 4 and i - 1 < NT - 1:
            jj = (i - 1) & 3
            L += [f'ds_write_b128 v{AR+jj}, {vr(OA + 16*jj + 4*q, 4)} offset:{1024*q}' for q in range(4)]
    L += stamp(4)
    L += [WaitLgkm0(), 's_barrier']
    own = OA + 48
    for j in range(3):
        L += [f'ds_read_b128 {vr(OA + 16*j + 4*q, 4)}, v{AR+3} offset:{4096*j + 1024*q}' for q in range(4)]
    for j in range(3):
        L += [f'v_add_f32 v{own+r}, v{own+r}, v{OA + 16*j + r}' for r in range(16)]
    return L
def attn_finish():
    own = OA + 48
    a, b = 200, 201
    L = ['L_fin:',
         f'v_mov_b32 v{a}, v{own+12}', f'v_mov_b32 v{b}, v{own+12}', f'v_permlane32_swap_b32 v{a}, v{b}',
         f'v_rcp_f32 v{a}, v{b}',
         f'v_cmp_nle_f32 vcc, {f2u(2.0**-40):#x}, v{b}', f's_mov_b32 s{T0}, {f2u(2.0**60):#x}', f'v_cmp_nle_f32 s[{T2}:{T3}], v{b}, s{T0}',
         f's_or_b64 vcc, vcc, s[{T2}:{T3}]', f's_and_b64 vcc, vcc, s[{T4}:{T5}]', 's_cbranch_vccnz L_slow']
    L += [f'v_mul_f32 v{own+r}, v{a}, v{own+r}' for r in range(16)]
    L += [f'v_cvt_pk_bf16_f32 v{own+i}, v{own+2*i}, v{own+2*i+1}' for i in range(8)]
    L += [f'v_cndmask_b32 v{own+6}, v{own+6}, 0, s[{sHI}:{sHI+1}]', f'v_cndmask_b32 v{own+7}, v{own+7}, 0, s[{sHI}:{sHI+1}]']
    L += [f's_lshl_b32 s{T0}, s{sQB}, 2', f's_add_u32 s{T0}, s{T0}, s{sW}', f's_lshl_b32 s{T0}, s{T0}, 4', f's_add_u32 s{T0}, s{T0}, s{sHD}',
          f's_lshl_b32 s{T0}, s{T0}, 11', f's_add_u32 s{T0}, s{T0}, {WS_O}',
          store4(own, T0, 0), store4(own + 4, T0, 1024)]
    L += stamp(5) + dump_stamps()
    L += ['s_endpgm']
    return L
def attn_slow():
    own = OA + 48; Q = QF + 24; S = SB[0]; K = KF[0]; V = VF[0]; P = PB[0]; M = 220
    L = ['L_slow:',
         f's_lshl_b32 s{T0}, s{sHD}, 17', f's_add_u32 s{sKO}, s{T0}, {WS_QKV + 16*131072}', f's_mov_b32 s{T1}, 0', f'v_mov_b32 v{M}, 0xff800000',
         'L_slow1:', ld4(K, sKO, 0), ld4(K + 4, sKO, 1024), 's_waitcnt vmcnt(0)',
         mfma(S, K, Q, None), mfma(S, K + 4, Q + 4, S)]
    L += [f'v_max3_f32 v{M}, v{S+2*i}, v{S+2*i+1}, v{M}' for i in range(8)]
    L += [f's_add_u32 s{sKO}, s{sKO}, 2048', f's_add_u32 s{T1}, s{T1}, 1', f's_cmp_lt_u32 s{T1}, 64', 's_cbranch_scc1 L_slow1',
          f'v_mov_b32 v{M+1}, v{M}', f'v_mov_b32 v{M+2}, v{M}', f'v_permlane32_swap_b32 v{M+1}, v{M+2}', f'v_max_f32 v{M}, v{M+1}, v{M+2}',
          f's_add_u32 s{sKO}, s{T0}, {WS_QKV + 16*131072}', f's_add_u32 s{sVO}, s{sKO}, {16*131072}', f's_mov_b32 s{T1}, 0']
    L += [f'v_mov_b32 v{own+r}, 0' for r in range(16)]
    L += ['L_slow2:', ld4(K, sKO, 0), ld4(K + 4, sKO, 1024), ld4(V, sVO, 0), ld4(V + 4, sVO, 1024), 's_waitcnt vmcnt(0)',
          mfma(S, K, Q, None), mfma(S, K + 4, Q + 4, S)]
    L += [f'v_sub_f32 v{S+r}, v{S+r}, v{M}' for r in range(16)]
    L += [f'v_exp_f32 v{S+r}, v{S+r}' for r in range(16)]
    L += [f'v_cvt_pk_bf16_f32 v{P+i}, v{S+2*i}, v{S+2*i+1}' for i in range(8)]
    L += [mfma(own, V, P, own), mfma(own, V + 4, P + 4, own),
          f's_add_u32 s{sKO}, s{sKO}, 2048', f's_add_u32 s{sVO}, s{sVO}, 2048', f's_add_u32 s{T1}, s{T1}, 1', f's_cmp_lt_u32 s{T1}, 64', 's_nop 7', 's_cbranch_scc1 L_slow2',
          's_nop 15', f's_mov_b64 s[{T4}:{T5}], 0', 's_branch L_fin']
    return L

HACC = 0
HF = 64
NH = 18
HW = [208, 216]
XR = 224
VH = [232, 233]; VD = 234; AD = [235, 236]; AD2 = [237, 238]; AE = 239; VXO = 240
sKQ, sMB, sNB, sHO, sDO, sRB0, sTH, sKH = 66, 67, 68, 69, 70, 71, 75, 76
def helper():
    L = []; e = L.append
    L += [Sync(vm=True)] + set_flag(WS_F2) + stamp(6)
    e(f's_cmp_ge_u32 s{sIDX}, 28'); e('s_cbranch_scc1 L_idle')
    e(f's_sub_u32 s{sKQ}, s{sW}, 4'); e(f's_and_b32 s{sTH}, s{sKQ}, 1'); e(f's_lshr_b32 s{sKH}, s{sKQ}, 1')
    e(f's_and_b32 s{T0}, s{sIDX}, 3'); e(f's_lshl_b32 s{sMB}, s{sXCD}, 2'); e(f's_add_u32 s{sMB}, s{sMB}, s{T0}'); e(f's_lshr_b32 s{sNB}, s{sIDX}, 2')
    e(f's_mul_i32 s{sRB0}, s{sKQ}, {RING}')
    a, b, c, d = 200, 201, 202, 203
    e(f'v_lshrrev_b32 v{a}, 3, v{LANE}'); e(f'v_and_b32 v{b}, 7, v{LANE}'); e(f'v_lshlrev_b32 v{c}, 1, v{a}'); e(f'v_and_b32 v{c}, 4, v{c}'); e(f'v_xor_b32 v{b}, v{b}, v{c}')
    e(f'v_mul_u32_u24 v{a}, 896, v{a}'); e(f'v_lshl_add_u32 v{VD}, v{b}, 4, v{a}')
    e(f's_mul_i32 s{sDO}, s{sKQ}, {448*896}'); e(f's_lshl_b32 s{T0}, s{sNB}, 7'); e(f's_add_u32 s{sDO}, s{sDO}, s{T0}')
    def wdma(i, s, tag):
        o = []
        for h in range(2):
            o += dma(VD, s, sDO, sRB0, (i % 14) * 2048 + h * 1024, tag) + [f's_add_u32 s{sDO}, s{sDO}, {8*896}']
        return o
    for i in range(14): L += wdma(i, SD, f'W{i}')
    e(f'v_bfe_u32 v{a}, v{LANE}, 2, 2'); e(f'v_bfe_u32 v{b}, v{LANE}, 3, 1'); e(f'v_lshlrev_b32 v{b}, 6, v{b}')
    e(f'v_and_b32 v{c}, 3, v{LANE}'); e(f'v_lshlrev_b32 v{c}, 3, v{c}'); e(f'v_or_b32 v{b}, v{b}, v{c}'); e(f'v_lshl_add_u32 v{b}, v{a}, 7, v{b}')
    e(f'v_bfe_u32 v{c}, v{LANE}, 4, 1'); e(f'v_lshlrev_b32 v{c}, 5, v{c}'); e(f'v_xor_b32 v{b}, v{b}, v{c}')
    e(f's_lshl_b32 s{T0}, s{sKH}, 6'); e(f'v_xor_b32 v{b}, s{T0}, v{b}')
    e(f's_mul_i32 s{T0}, s{sKH}, {2*RING}'); e(f'v_add_u32 v{AD2[0]}, s{T0}, v{b}'); e(f'v_xor_b32 v{AD2[1]}, 64, v{AD2[0]}')
    e(f'v_lshrrev_b32 v{c}, 5, v{LANE}'); e(f'v_lshl_add_u32 v{b}, v{c}, 9, v{b}')
    e(f'v_add_u32 v{AD[0]}, s{sRB0}, v{b}'); e(f'v_xor_b32 v{AD[1]}, 64, v{AD[0]}')
    e(f's_lshl_b32 s{T0}, s{sMB}, 1'); e(f's_add_u32 s{T1}, s{T0}, s{sTH}'); e(f's_xor_b32 s{T2}, s{T1}, 1')
    e(f's_mul_i32 s{T3}, s{T1}, {112*1024}'); e(f'v_add_u32 v{VH[0]}, s{T3}, v{L16}'); e(f's_mul_i32 s{T3}, s{T2}, {112*1024}'); e(f'v_add_u32 v{VH[1]}, s{T3}, v{L16}')
    e(f's_mul_i32 s{sHO}, s{sKQ}, {28*1024}'); e(f's_add_u32 s{sHO}, s{sHO}, {WS_H}')
    e(f'v_and_b32 v{a}, 31, v{LANE}'); e(f's_lshl_b32 s{T3}, s{T1}, 5'); e(f'v_add_u32 v{a}, s{T3}, v{a}'); e(f'v_mul_u32_u24 v{a}, 896, v{a}')
    e(f's_lshl_b32 s{T3}, s{sNB}, 7'); e(f's_lshl_b32 s{T4}, s{sKH}, 6'); e(f's_add_u32 s{T3}, s{T3}, s{T4}'); e(f'v_add_u32 v{a}, s{T3}, v{a}')
    e(f'v_lshl_add_u32 v{VXO}, v{c}, 3, v{a}')
    for i in range(4): e(f'buffer_load_dwordx2 {vr(XR+2*i,2)}, v{VXO}, {srd(SX)}, 0 offen offset:{16*i}')
    e(f'v_lshl_add_u32 v{VXO}, v{c}, 4, v{a}')
    e(f'v_and_b32 v{a}, 15, v{LANE}'); e(f'v_lshlrev_b32 v{a}, 7, v{a}'); e(f'v_bfe_u32 v{b}, v{LANE}, 4, 1'); e(f'v_lshl_add_u32 v{a}, v{b}, 2, v{a}')
    e(f'v_lshl_add_u32 v{a}, v{c}, 4, v{a}')
    e(f's_lshr_b32 s{T0}, s{sMB}, 1'); e(f's_lshl_b32 s{T0}, s{T0}, 11'); e(f's_and_b32 s{T1}, s{sMB}, 1'); e(f's_lshl_b32 s{T1}, s{T1}, 3')
    e(f's_add_u32 s{T0}, s{T0}, s{T1}'); e(f's_add_u32 s{T0}, s{T0}, {WS_F2}'); e(f'v_add_u32 v{a}, s{T0}, v{a}')
    L += [Sync()] + poll(a, 'L_pollh', b)
    L += stamp(3)
    def hload(i):
        o = []
        if i and i % 4 == 0: o.append(f's_add_u32 s{sHO}, s{sHO}, 4096')
        for mi in range(2):
            o.append(Ins(f'buffer_load_dwordx4 {vr(HF + 8*(i % NH) + 4*mi, 4)}, v{VH[mi]}, {srd(SWS)}, s{sHO} offen offset:{(i%4)*1024} sc1'))
        return o
    for i in range(NH): L += hload(i)
    def wread(i):
        o = [WaitTag(f'W{i}')]
        for u in range(2):
            off = (i % 14) * 2048
            o += [f'ds_read_b64_tr_b16 {vr(HW[i&1] + 4*u, 2)}, v{AD[u]} offset:{off}', f'ds_read_b64_tr_b16 {vr(HW[i&1] + 4*u + 2, 2)}, v{AD[u]} offset:{off+1024}']
        return o
    L += wread(0)
    for i in range(28):
        if i == OPT['fpoint']: L += ['s_barrier'] + stamp(4)
        nxt = wread(i + 1) if i < 27 else []
        mm = [mfma(HACC + 32*mi + 16*u, HW[i & 1] + 4*u, HF + 8*(i % NH) + 4*mi, None if i == 0 else HACC + 32*mi + 16*u) for mi in range(2) for u in range(2)]
        L += [mm[0]] + nxt + [mm[1]]
        if i + 14 < 28: L += wdma(i + 14, SD, f'W{i+14}')
        elif i < 21:
            if i == 14:
                L += [f's_mul_i32 s{sDO}, s{sKQ}, {112*896}', f's_lshl_b32 s{T0}, s{sNB}, 7', f's_add_u32 s{sDO}, s{sDO}, s{T0}']
            L += wdma(i, SWO, 'WO')
        L += [mm[2], mm[3]]
        if i + NH < 28: L += hload(i + NH)
    e(f's_xor_b32 s{T0}, s{sKQ}, 1'); e(f's_mul_i32 s{T0}, s{T0}, {RING}'); e(f's_add_u32 s{T0}, s{T0}, {7*2048}')
    e(f's_add_u32 s{T1}, s{sRB0}, {7*2048}'); e(f'v_add_u32 v{AE}, s{T1}, v{L16}'); e(f'v_add_u32 v{a}, s{T0}, v{L16}')
    for i in range(8):
        L += [f'v_lshlrev_b32 v{c}, 16, v{XR+i}', f'v_and_b32 v{d}, s{sMASK}, v{XR+i}', f'v_add_f32 v{HACC+2*i}, v{HACC+2*i}, v{c}', f'v_add_f32 v{HACC+2*i+1}, v{HACC+2*i+1}, v{d}']
    L += [f'ds_write_b128 v{AE}, {vr(HACC + 32 + 4*q, 4)} offset:{1024*q}' for q in range(8)]
    L += stamp(7) + [WaitTag('WO'), WaitLgkm0(), 's_barrier']
    L += [f'ds_read_b128 {vr(HACC + 32 + 4*q, 4)}, v{a} offset:{1024*q}' for q in range(8)]
    L += [f'v_add_f32 v{HACC+r}, v{HACC+r}, v{HACC+32+r}' for r in range(32)]
    e(f's_lshl_b32 s{T0}, s{sMB}, 1'); e(f's_add_u32 s{T0}, s{T0}, s{sTH}'); e(f's_lshl_b32 s{T0}, s{T0}, 1'); e(f's_add_u32 s{T0}, s{T0}, s{sKH}')
    e(f's_lshl_b32 s{T0}, s{T0}, 14'); e(f's_add_u32 s{sHO}, s{T0}, {WS_O}')
    e(f's_mul_i32 s{T0}, s{sKH}, {2*RING}'); e(f's_sub_u32 s{T0}, s{T0}, s{sRB0}'); e(f'v_add_u32 v{AD[0]}, s{T0}, v{AD[0]}'); e(f'v_add_u32 v{AD[1]}, s{T0}, v{AD[1]}')
    L += [Sync(), f's_mov_b32 s{T5}, 0', 'L_pollo:', f's_mov_b32 s{T0}, s{sHO}']
    for f in range(16):
        if f and f % 4 == 0: e(f's_add_u32 s{T0}, s{T0}, 4096')
        L.append(ld4(HF + 4*f, T0, (f % 4) * 1024))
    e(f's_add_u32 s{T5}, s{T5}, 1')
    e(f'v_max_u32 v{c}, v{HF}, v{HF+1}')
    for r in range(2, 64, 2): e(f'v_max3_u32 v{c}, v{HF+r}, v{HF+r+1}, v{c}')
    L += [f'v_cmp_eq_u32 vcc, -1, v{c}', f's_cmp_lt_u32 s{T5}, 20000', f's_cselect_b64 s[{T2}:{T3}], -1, 0',
          f's_and_b64 vcc, vcc, s[{T2}:{T3}]', 's_cbranch_vccnz L_pollo']
    L += stamp(5)
    def oread(f):
        hd, st = f >> 1, f & 1
        base = (hd >> 2) * RING + ((hd & 3) * 28 + 16 * st) * 128
        o = []
        for u in range(2):
            o.append(f'ds_read_b64_tr_b16 {vr(HW[f&1] + 4*u, 2)}, v{AD[u]} offset:{base}')
            o.append(f'ds_read_b64_tr_b16 {vr(HW[f&1] + 4*u + 2, 2)}, v{AD2[u] if st else AD[u]} offset:{base+1024}')
        return o
    L += oread(0)
    for f in range(16):
        nxt = oread(f + 1) if f < 15 else []
        L += [mfma(HACC + 16, HW[f & 1] + 4, HF + 4*f, HACC + 16)] + nxt + [mfma(HACC, HW[f & 1], HF + 4*f, HACC)]
    e(f's_xor_b32 s{T0}, s{sKQ}, 2'); e(f's_mul_i32 s{T0}, s{T0}, {RING}'); e(f's_add_u32 s{T0}, s{T0}, {7*2048}'); e(f'v_add_u32 v{a}, s{T0}, v{L16}')
    L += [f'ds_write_b128 v{AE}, {vr(HACC + 16 + 4*q, 4)} offset:{8192 + 1024*q}' for q in range(4)]
    L += [WaitLgkm0(), 's_barrier']
    L += [f'ds_read_b128 {vr(HACC + 16 + 4*q, 4)}, v{a} offset:{8192 + 1024*q}' for q in range(4)]
    L += [f'v_add_f32 v{HACC+r}, v{HACC+r}, v{HACC+16+r}' for r in range(16)]
    L += [f'v_cvt_pk_bf16_f32 v{HACC+i}, v{HACC+2*i}, v{HACC+2*i+1}' for i in range(8)]
    for k in range(2):
        L += [f'v_permlane32_swap_b32 v{HACC+4*k}, v{HACC+4*k+2}', f'v_permlane32_swap_b32 v{HACC+4*k+1}, v{HACC+4*k+3}']
    for k in range(2):
        e(f'buffer_store_dwordx4 {vr(HACC+4*k,4)}, v{VXO}, {srd(SOUT)}, 0 offen offset:{32*k}')
    if OPT['stamps']:
        L += [f's_mov_b32 s{sST+9}, s{T5}'] + stamp(8) + dump_stamps()
    e('s_endpgm')
    return L
def idle():
    L = ['L_idle:', 's_cmp_lg_u32 s2, 255', 's_cbranch_scc1 L_end', f's_cmp_lg_u32 s{sW}, 4', 's_cbranch_scc1 L_end']
    a, b = 200, 201
    L += [f'v_lshlrev_b32 v{a}, 7, v{LANE}', f'v_add_u32 v{a}, {WS_F2}, v{a}', f's_mov_b32 s{T0}, 0', 'L_idle1:']
    L += poll(a, 'L_polln', b)
    L += [f'v_add_u32 v{a}, 8192, v{a}', f's_add_u32 s{T0}, s{T0}, 1', f's_cmp_lt_u32 s{T0}, 4', 's_cbranch_scc1 L_idle1',
          f'v_mov_b32 v{b}, s{sTAG}', 's_mov_b64 exec, 1', f'buffer_store_dword v{b}, v{L16}, {srd(SWS)}, 0 offen sc1', 'L_end:', 's_endpgm']
    return L

def build():
    tr = Tracker()
    parts = []
    def sub(state, L):
        t = state.clone_state(); t.feed_all(L); parts.append(t); return t
    tr.feed_all(setup()); tr.feed_all(pass_A()); tr.feed_all(stamp(2))
    if OPT['chunkst']:
        tr.feed_all([Sync()] + dump_stamps() + ['s_endpgm'])
    CR = SIDE[0]
    tr.feed_all(stats())
    tr.feed_all(caddr_head(UT[0]) + cread(CR, UT[0], 0) + correct(ACCA[0], CR))
    tr.feed_all([f's_cmp_eq_u32 s{sISV}, 1', 's_cbranch_scc1 L_epiV'])
    parts.append(tr)
    t1 = sub(tr, epi_T(ACCA[0], 0) + ['s_branch L_epi1'])
    t2 = sub(tr, ['L_epiV:'] + epi_V(ACCA[0]) + [WaitLgkm0(), 's_nop 1'])
    j = t2.clone_state(); j.lg = []
    j.feed_all(['L_epi1:', f's_cmp_eq_u32 s{sISY}, 1', 's_cbranch_scc1 L_epiY'])
    parts.append(j)
    X = caddr_gu(UT[0]) + cread(CR, UT[0], 2048) + [f'v_xor_b32 v{UT[0]}, 512, v{UT[0]}'] + cread(CR + 4, UT[0], 2048)
    X += correct(ACCA[1], CR) + correct(ACCA[2], CR + 4) + epi_gu(ACCA[1], sFLA, 0) + epi_gu(ACCA[2], sFLA, 1) + ['s_branch L_epi2']
    tx = sub(j, X)
    Y = ['L_epiY:'] + caddr_head(UT[0]) + cread(CR, UT[0], 2048) + cread(CR + 4, UT[0], 4096)
    Y += correct(ACCA[1], CR) + correct(ACCA[2], CR + 4) + epi_T(ACCA[1], 1) + epi_T(ACCA[2], 2) + ['s_nop 1']
    ty = sub(j, Y)
    k = tx.clone_state(); k.lg = []
    k.feed_all(['L_epi2:'] + pass_B(flag_at=10))
    E = caddr_gu(UT[0]) + cread(CR, UT[0], 0) + [f'v_xor_b32 v{UT[0]}, 512, v{UT[0]}'] + cread(CR + 4, UT[0], 0) + [WaitLgkm0(), 's_barrier']
    E += correct(ACCB[0], CR) + correct(ACCB[1], CR + 4) + epi_gu(ACCB[0], sCB, 0) + epi_gu(ACCB[1], sCB, 1)
    k.feed_all(E)
    k.feed_all([f's_cmp_ge_u32 s{sW}, 4', 's_cbranch_scc1 L_helper'])
    parts.append(k)
    ta = sub(k, ['s_setprio 3'] + attn_setup() + stamp(3) + attn_main() + [f's_mov_b64 s[{T4}:{T5}], -1'] + attn_finish())
    ts = Tracker(); ts.feed_all(attn_slow()); parts.append(ts)
    th = sub(k, ['L_helper:'] + helper())
    ti = Tracker(); ti.feed_all(idle()); parts.append(ti)
    body = '\n'.join(p.text() for p in parts)
    nops = sum(p.nops for p in parts)
    for p in parts:
        for n, t in p.log: print(f'nop {n}: {t}', file=sys.stderr)
    print('total nop states', nops, file=sys.stderr)
    hdr = f'''; fused layernorm + (MHA -> Wo) + (ReGLU FFN) + residual, one persistent launch (generated by gen/gen.py)
; @launch grid=(256,1,1) block=(512,1,1) lds=163840
.amdgcn_target "amdgcn-amd-amdhsa--gfx950"
.text
.globl {NAME}_kernel
.p2align 8
.type {NAME}_kernel,@function
{NAME}_kernel:
'''
    ftr = f'''
.section .rodata,"a"
.p2align 6
.amdhsa_kernel {NAME}_kernel
  .amdhsa_next_free_vgpr 256
  .amdhsa_next_free_sgpr 102
  .amdhsa_accum_offset 256
  .amdhsa_group_segment_fixed_size 0
  .amdhsa_kernarg_size 80
  .amdhsa_user_sgpr_count 2
  .amdhsa_user_sgpr_kernarg_segment_ptr 1
  .amdhsa_system_sgpr_workgroup_id_x 1
.end_amdhsa_kernel
'''
    return hdr + body + ftr

if __name__ == '__main__':
    open(sys.argv[1], 'w').write(build())
```

```python
import sys
N='parallel_sum__softmax_full_mha__glu_gated_reglu__prompt'
WS_STAMP = 4096 + 65536
def make(src, dst, j, sel, red='max', mult=1):
    s = open(src).read()
    nwg = 256 if sel == 'A' else 224
    woff = 0 if sel == 'A' else 4
    rop = 'v_max_u32' if red == 'max' else 'v_min_u32'
    init = 0 if red == 'max' else -1
    body = f"""
.text
.globl probe_kernel
.p2align 8
.type probe_kernel,@function
probe_kernel:
    s_cmp_ge_u32 s2, 1
    s_cbranch_scc1 P_end
    s_load_dwordx2 s[4:5], s[0:1], 72
    s_waitcnt lgkmcnt(0)
    s_mov_b32 s8, s4
    s_mov_b32 s9, s5
    s_mov_b32 s10, 0x1000000
    s_mov_b32 s11, 0x20000
    v_lshrrev_b32 v1, 2, v0
    v_and_b32 v2, 3, v0
    v_lshlrev_b32 v1, 9, v1
    v_lshl_add_u32 v1, v2, 6, v1
    v_add_u32 v1, {WS_STAMP + woff*64}, v1
    v_mov_b32 v4, -1
    v_mov_b32 v5, {init}
    s_mov_b32 s12, 0
P_l:
    buffer_load_dword v6, v1, s[8:11], 0 offen offset:44
    buffer_load_dword v7, v1, s[8:11], 0 offen offset:{max(j,0)*4}
    s_waitcnt vmcnt(0)
    v_min_u32 v4, v4, v6
    {rop} v5, v5, v7
    v_add_u32 v1, 8192, v1
    s_add_u32 s12, s12, 16
    s_cmp_lt_u32 s12, {nwg}
    s_cbranch_scc1 P_l
    s_mov_b32 s13, -1
    s_mov_b32 s14, {init}
    s_mov_b32 s12, 0
P_r:
    s_nop 4
    v_readlane_b32 s15, v4, s12
    v_readlane_b32 s16, v5, s12
    s_nop 4
    s_min_u32 s13, s13, s15
    {'s_max_u32' if red == 'max' else 's_min_u32'} s14, s14, s16
    s_add_u32 s12, s12, 1
    s_cmp_lt_u32 s12, 64
    s_cbranch_scc1 P_r
    s_sub_u32 s14, s14, s13
    s_mul_i32 s14, s14, {mult if j >= 0 else 0}
    s_min_u32 s14, s14, 20000
    s_memrealtime s[18:19]
    s_waitcnt lgkmcnt(0)
P_w:
    s_memrealtime s[20:21]
    s_waitcnt lgkmcnt(0)
    s_sub_u32 s22, s20, s18
    s_cmp_lt_u32 s22, s14
    s_cbranch_scc1 P_w
P_end:
    s_endpgm
.section .rodata,"a"
.p2align 6
.amdhsa_kernel probe_kernel
  .amdhsa_next_free_vgpr 16
  .amdhsa_next_free_sgpr 32
  .amdhsa_accum_offset 16
  .amdhsa_group_segment_fixed_size 0
  .amdhsa_kernarg_size 80
  .amdhsa_user_sgpr_count 2
  .amdhsa_user_sgpr_kernarg_segment_ptr 1
  .amdhsa_system_sgpr_workgroup_id_x 1
.end_amdhsa_kernel
"""
    L=f"; @launch kernel={N}_kernel grid=(256,1,1) block=(512,1,1) lds=163840"
    E="; @launch kernel=probe_kernel grid=(1,1,1) block=(64,1,1) lds=0"
    old="; @launch grid=(256,1,1) block=(512,1,1) lds=163840"
    open(dst,'w').write(s.replace(old, L+"\n"+E)+body)
if __name__ == '__main__':
    src = sys.argv[1]
    for spec in sys.argv[2:]:
        sel, j = spec[0], int(spec[1:])
        make(src, f't/p_{spec}.s', j, sel)
```

```python
import re

REG_RE = re.compile(r'(?<![\w.])([vsa])(?:(\d+)|\[(\d+):(\d+)\])(?![\w])')

def regs_in(op):
    out = []
    for m in REG_RE.finditer(op):
        k = m.group(1)
        if m.group(2) is not None:
            out.append((k, int(m.group(2))))
        else:
            out += [(k, i) for i in range(int(m.group(3)), int(m.group(4)) + 1)]
    for sp in ('vcc', 'exec', 'm0'):
        if re.search(r'(?<![\w])' + sp + r'(?:_lo|_hi)?(?![\w])', op):
            out.append((sp, 0))
    return out

TRANS = ('v_exp_f32', 'v_log_f32', 'v_rcp_f32', 'v_rsq_f32', 'v_sqrt_f32', 'v_sin_f32', 'v_cos_f32')

class Ins:
    def __init__(self, text, tag=None):
        self.text = text.strip()
        self.tag = tag
        t = self.text.split(';')[0].strip()
        self.label = t.endswith(':')
        self.directive = t.startswith('.')
        self.rd = set(); self.wr = set(); self.kind = 'other'
        self.srcc = set(); self.srcab = set(); self.passes = 0
        self.op = ''
        if self.label or self.directive or not t:
            self.kind = 'meta'
            return
        parts = t.split(None, 1)
        op = parts[0]; self.op = op
        rest = parts[1] if len(parts) > 1 else ''
        ops = [o.strip() for o in rest.split(',')] if rest else []
        R = [regs_in(o) for o in ops]
        flat = lambda L: set(x for l in L for x in l)
        base = re.sub(r'_(e32|e64|sdwa|dpp)$', '', op)
        if op.startswith('v_mfma'):
            self.kind = 'mfma'
            self.wr = set(R[0]); self.srcab = flat(R[1:3]); self.srcc = set(R[3]); self.rd = self.srcab | self.srcc
            self.passes = 8 if '32x32' in op else 4
        elif op.startswith('v_'):
            self.kind = 'trans' if base in TRANS else 'valu'
            if op.startswith('v_permlane') and 'swap' in op:
                self.wr = flat(R[:2]); self.rd = flat(R[:2])
            elif op.startswith('v_cmp'):
                self.wr = set(R[0]); self.rd = flat(R[1:])
            elif base in ('v_add_co_u32', 'v_addc_co_u32', 'v_sub_co_u32'):
                self.wr = flat(R[:2]); self.rd = flat(R[2:])
            else:
                self.wr = set(R[0]); self.rd = flat(R[1:])
                if base in ('v_fmac_f32', 'v_dot2c_f32_bf16', 'v_writelane_b32') or 'dpp' in op or 'row_' in t or 'quad_perm' in t or 'UNUSED_PRESERVE' in t:
                    self.rd |= set(R[0])
            self.dpp = ('row_' in t or 'quad_perm' in t or 'dpp' in op)
        elif op.startswith('ds_'):
            self.kind = 'ds'
            if op.startswith('ds_read') or 'permute' in op or 'swizzle' in op or '_rtn' in op:
                self.wr = set(R[0]); self.rd = flat(R[1:])
            else:
                self.rd = flat(R)
        elif op.startswith('buffer_') or op.startswith('global_'):
            self.kind = 'vmem'
            self.isdma = bool(re.search(r'\blds\b', t))
            if 'load' in op and not self.isdma:
                self.wr = set(R[0]); self.rd = flat(R[1:])
            else:
                self.rd = flat(R)
                if self.isdma: self.rd.add(('m0', 0))
            self.wide_store = ('store' in op and ('x3' in op or 'x4' in op))
            self.sdata = set(R[0]) if ('store' in op and op.startswith('buffer_')) else set()
        elif op.startswith('s_'):
            self.kind = 'salu'
            if op.startswith('s_load') or op in ('s_memtime', 's_memrealtime'):
                self.kind = 'smem'
                self.wr = set(R[0]); self.rd = flat(R[1:])
            elif op in ('s_waitcnt', 's_barrier', 's_nop', 's_endpgm', 's_setprio', 's_sleep') or op.startswith('s_branch') or op.startswith('s_cbranch'):
                self.kind = 'ctl'
                if 'vcc' in op: self.rd.add(('vcc', 0))
            elif op.startswith('s_cmp') or op.startswith('s_bitcmp'):
                self.rd = flat(R)
            else:
                self.wr = set(R[0]); self.rd = flat(R[1:])
                if 'saveexec' in op: self.wr.add(('exec', 0))
        else:
            raise ValueError('unknown op ' + t)

    def states(self):
        if self.kind == 'meta' or getattr(self, 'skippable', False): return 0
        if self.op == 's_nop':
            return int(self.text.split()[1]) + 1
        return 1

class WaitTag:
    def __init__(self, *tags): self.tags = set(tags)
class DropTag:
    def __init__(self, *tags): self.tags = set(tags)
class Cond:
    def __init__(self, on): self.on = on
class WaitLgkm0:
    pass
class Sync:
    def __init__(self, vm=True, lgkm=True): self.vm = vm; self.lgkm = lgkm

class Tracker:
    def __init__(self):
        self.vm = []
        self.lg = []
        self.hist = []
        self.out = []
        self.nops = 0
        self.log = []
    def clone_state(self):
        t = Tracker(); t.vm = list(self.vm); t.lg = list(self.lg); t.hist = list(self.hist[-60:]); return t
    def _emit(self, ins):
        self.out.append(ins);
        if ins.kind != 'meta': self.hist.append(ins)
    def _wait(self, vm=None, lg=None):
        parts = []
        if vm is not None:
            vm = min(vm, 63)
            if vm < len(self.vm):
                parts.append(f'vmcnt({vm})'); self.vm = self.vm[len(self.vm) - vm:] if vm else []
        if lg is not None:
            lg = min(lg, 15)
            if lg < len(self.lg):
                parts.append(f'lgkmcnt({lg})'); self.lg = self.lg[len(self.lg) - lg:] if lg else []
        if parts:
            self._emit(Ins('s_waitcnt ' + ' '.join(parts)))
    def need_states(self, c):
        need = 0; dist = 0
        for p in reversed(self.hist):
            if dist >= 20: break
            r = self._pair(p, c)
            if r > dist: need = max(need, r - dist)
            dist += p.states()
        return need
    def _pair(self, p, c):
        V = lambda s: set(x for x in s if x[0] in 'va')
        S = lambda s: set(x for x in s if x[0] == 's' or x[0] == 'vcc')
        r = 0
        isvalu = lambda i: i.kind in ('valu', 'trans')
        if p.kind == 'mfma':
            big = {8: 12, 4: 8}[p.passes]
            if c.kind == 'mfma':
                if p.wr & c.srcab: r = max(r, big)
                if p.wr & c.srcc:
                    if not (p.wr == c.srcc and p.passes == c.passes): r = max(r, big - 2)
            elif isvalu(c) or c.kind in ('ds', 'vmem'):
                if p.wr & (c.rd | c.wr): r = max(r, big)
                if isvalu(c) and (p.srcc & c.wr): r = max(r, {8: 7, 4: 3}[p.passes])
        elif isvalu(p):
            pv = V(p.wr); ps = S(p.wr)
            if c.kind == 'mfma' and (pv & c.rd): r = max(r, 2)
            if p.op.startswith('v_dot') and isvalu(c) and c.op != p.op and (pv & (c.rd | c.wr)): r = max(r, 3)
            if isvalu(c):
                if p.kind == 'trans' and c.kind != 'trans' and (pv & c.rd): r = max(r, 1)
                if c.op.startswith('v_permlane') and (pv & c.rd): r = max(r, 2)
                if getattr(c, 'dpp', False) and (pv & c.rd): r = max(r, 2)
                if c.op.startswith('v_readfirstlane') or c.op.startswith('v_readlane'):
                    if pv & c.rd: r = max(r, 1)
                    if ps & c.rd: r = max(r, 4)
                if ps & c.rd: r = max(r, 2)
                if ('sdwa' in p.op or 'op_sel' in p.text) and (pv & (c.rd | c.wr)): r = max(r, 1)
            if c.kind == 'vmem' and (ps & c.rd): r = max(r, 5)
            if c.kind in ('salu', 'ctl') and (ps & c.rd): r = max(r, 3)
        elif p.kind == 'salu':
            if ('m0', 0) in p.wr and c.kind == 'vmem' and c.isdma: r = max(r, 1)
        elif p.kind == 'vmem':
            if p.wide_store and (p.sdata & c.wr): r = max(r, 2)
        return r
    def feed(self, x):
        if isinstance(x, str): x = Ins(x)
        if isinstance(x, WaitTag):
            idx = [i for i, (t, _) in enumerate(self.vm) if t in x.tags]
            if idx: self._wait(vm=len(self.vm) - 1 - max(idx))
            return
        if isinstance(x, Cond):
            if x.on: self.cond_start = len(self.hist)
            else:
                for i in self.hist[self.cond_start:]: i.skippable = True
            return
        if isinstance(x, DropTag):
            self.vm = [e for e in self.vm if e[0] not in x.tags]; return
        if isinstance(x, WaitLgkm0):
            self._wait(lg=0); return
        if isinstance(x, Sync):
            self._wait(vm=0 if x.vm else None, lg=0 if x.lgkm else None); return
        ins = x
        if ins.kind == 'meta':
            self._emit(ins); return
        if ins.op == 's_waitcnt':
            m = re.search(r'vmcnt\((\d+)\)', ins.text)
            if m:
                n = int(m.group(1)); self.vm = self.vm[len(self.vm) - n:] if n and n < len(self.vm) else ([] if n == 0 else self.vm)
            m = re.search(r'lgkmcnt\((\d+)\)', ins.text)
            if m:
                n = int(m.group(1)); self.lg = self.lg[len(self.lg) - n:] if n and n < len(self.lg) else ([] if n == 0 else self.lg)
            self._emit(ins); return
        if ins.op.startswith('s_cselect') or ins.op.startswith('s_cbranch_scc'):
            for p in reversed(self.hist):
                if p.op.startswith('s_cmp') or p.op.startswith('s_bitcmp'): break
                if p.kind == 'salu' and not (p.op.startswith('s_mov') or p.op.startswith('s_cselect') or p.op.startswith('s_mul') or p.op.startswith('s_getpc')):
                    raise ValueError(f'SCC clobbered by {p.text} before {ins.text}')
        touch = ins.rd | ins.wr
        wv = None; wl = None
        idx = [i for i, (_, d) in enumerate(self.vm) if d & touch]
        if idx: wv = len(self.vm) - 1 - max(idx)
        idx = [i for i, d in enumerate(self.lg) if d[1] & touch]
        if idx:
            wl = len(self.lg) - 1 - max(idx)
            if any(d[0] == 'smem' for d in self.lg): wl = 0
        if wv is not None or wl is not None: self._wait(vm=wv, lg=wl)
        n = self.need_states(ins)
        if n > 0:
            self.nops += n
            self.log.append((n, ins.text))
            while n > 0:
                k = min(n, 16)
                self._emit(Ins(f's_nop {k-1}')); n -= k
        self._emit(ins)
        if ins.kind == 'vmem': self.vm.append((ins.tag, set(ins.wr)))
        elif ins.kind == 'ds': self.lg.append(('ds', set(ins.wr)))
        elif ins.kind == 'smem': self.lg.append(('smem', set(ins.wr)))
    def feed_all(self, L):
        for x in L: self.feed(x)
    def text(self):
        o = []
        for i in self.out:
            o.append(i.text if (i.label or i.directive) else '    ' + i.text)
        return '\n'.join(o)

def vr(a, n=1):
    return f'v{a}' if n == 1 else f'v[{a}:{a+n-1}]'
def sr(a, n=1):
    return f's{a}' if n == 1 else f's[{a}:{a+n-1}]'

def interleave(main, filler, counts=None):
    slots = [i for i, x in enumerate(main) if (isinstance(x, str) and x.startswith('v_mfma')) or (isinstance(x, Ins) and x.kind == 'mfma')]
    n = len(slots)
    out = []; fi = 0; k = 0
    for i, x in enumerate(main):
        out.append(x)
        if k < n and i == slots[k]:
            k += 1
            upto = (len(filler) * k + n - 1) // n if counts is None else min(len(filler), sum(counts[:k]))
            out += filler[fi:upto]; fi = max(fi, upto)
    out += filler[fi:]
    return out
```

```python
import sys, math, struct
from asmfw import *

NAME = 'parallel_sum__softmax_full_mha__glu_gated_reglu__prompt'
OPT = dict(stamps=0, rt=0, chunkst=0, fpoint=10, dspread=10, dshift=1, epik=14, f1x=9, f1y=13, pollk=24, hwin=8, okick=3,
           noc=0, nostat=0, nodma=0, touch=1, hprio=1, cvalu=0, vfirst=0, cpos=0, sdot=0, startst=0, a1pre=3, vprio=0)
for a in sys.argv[2:]:
    k, v = a.split('=')
    assert k in OPT, k
    OPT[k] = int(v)
def f2u(x): return struct.unpack('<I', struct.pack('<f', x))[0]

WS_NONCE = 0
WS_F1 = 4096
WS_F2 = WS_F1 + 32768
WS_STAMP = WS_F2 + 32768
WS_QKV = 1 << 20
WS_O = WS_QKV + 48 * 131072
WS_H = WS_O + 64 * 32768
WS_END = WS_H + 64 * 112 * 1024
TAGK = 0x9E3779B9

LX = 0
LI = [49152, 73728, 98304]
LF0, LF1 = 122880, 139264
LC = 155648
LST = LC + 6144
BSLOT = [LF0, LF1, LX + 16384, LX + 32768, LI[0] + 8192, LI[1] + 8192, LI[2] + 8192]
LVT = LX
LSCR = 114688
RING = 28672

SX, SI0, SI1, SI2, SG, SU, SWS, SD, SWO, SOUT = 20, 24, 28, 32, 36, 40, 44, 48, 52, 56
sW, sRB, sCB, sTAG, sXCD, sIDX = 60, 61, 62, 63, 64, 65
sOX, sO0, sO1, sO2, sSTEP, sOB = 66, 67, 68, 69, 70, 71
sW2K, sW1K, sMASK, sP0, sM, sCG = 72, 73, 74, 75, 76, 77
sKIND, sRG, sSCALE = 78, 79, 80
T0, T1, T2, T3, T4, T5 = 82, 83, 84, 85, 86, 87
sHI = 88
sQO = [4, 5, 6]; sHA, sHB, sFL = 7, 8, 9
sST = 90
srd = lambda b: sr(b, 4)

ACCA = [0, 16, 32]; ACCB = [48, 64]
WF = [80, 92]
UT = [88, 89, 90, 91]; CR = 100
ABW = [[104 + 4*t + s for s in range(4)] for t in range(2)]
SEL = 112
CACC = [116, 120, 124]
RS2, CR2 = 240, 124
XF = 128
VG, VU = 242, 243
CAD, L16, LANE, TMPV, RSTD = 241, 244, 245, 246, 247
CB_ = 248; CA_ = 252
AX = [48, 49, 50, 51]; VX = [52, 53]; VI = [54, 55, 56]
AW = [[60 + 4*t + s for s in range(4)] for t in range(3)]
S1, S2 = 57, 58; ST = [72, 73, 74, 75]

MF = 'v_mfma_f32_32x32x16_bf16'
def mfma(d, a, b, c=None):
    cs = '0' if c is None else vr(c, 16)
    return f'{MF} {vr(d,16)}, {vr(a,4)}, {vr(b,4)}, {cs}'
def mfma16(d, a, b, first):
    return f'v_mfma_f32_16x16x32_bf16 {vr(d,4)}, {vr(a,4)}, {vr(b,4)}, ' + ('0' if first else vr(d, 4))
CLK = 's_memrealtime' if OPT['rt'] else 's_memtime'
def stamp(i):
    if not OPT['stamps']: return []
    return [WaitLgkm0(), CLK + ' s[100:101]', 's_waitcnt lgkmcnt(0)', f's_mov_b32 s{sST+i}, s100']
def dump_stamps():
    if not OPT['stamps']: return []
    L = [f's_lshl_b32 s{T0}, s2, 3', f's_add_u32 s{T0}, s{T0}, s{sW}', f's_lshl_b32 s{T0}, s{T0}, 6', f's_add_u32 s{T0}, s{T0}, {WS_STAMP}',
         f's_memrealtime s[{T2}:{T3}]', 's_waitcnt lgkmcnt(0)']
    for i in range(10): L.append(f'v_mov_b32 v{208+i}, s{sST+i}')
    L += [f'v_mov_b32 v218, s{T2}', f'v_mov_b32 v219, s3', 'v_mov_b32 v220, 0',
          f'buffer_store_dwordx4 v[208:211], v220, {srd(SWS)}, s{T0} offen',
          f'buffer_store_dwordx4 v[212:215], v220, {srd(SWS)}, s{T0} offen offset:16',
          f'buffer_store_dwordx4 v[216:219], v220, {srd(SWS)}, s{T0} offen offset:32']
    return L
def split(L, n):
    return [L[(len(L) * i) // n:(len(L) * (i + 1)) // n] for i in range(n)]
def flat(L):
    o = []
    for x in L: o += x if isinstance(x, list) else [x]
    return o

def dma(vaddr, s, soff, m0base, m0imm, tag):
    return [f's_add_u32 m0, s{m0base}, {m0imm}', Ins(f'buffer_load_dwordx4 v{vaddr}, {srd(s)}, s{soff} offen lds', tag)]
def dma_A(c):
    sl = c % 3; tag = f'A{c}'
    return [dma(VX[0], SX, sOX, sW2K, LX + sl * 16384, tag),
            dma(VX[1], SX, sOX, sW2K, LX + sl * 16384 + 1024, tag) + [f's_add_u32 s{sOX}, s{sOX}, 128'],
            dma(VI[0], SI0, sO0, sW1K, LI[0] + sl * 8192, tag) + [f's_add_u32 s{sO0}, s{sO0}, {64*2688}'],
            dma(VI[1], SI1, sO1, sW1K, LI[1] + sl * 8192, tag) + [f's_add_u32 s{sO1}, s{sO1}, s{sSTEP}'],
            dma(VI[2], SI2, sO2, sW1K, LI[2] + sl * 8192, tag) + [f's_add_u32 s{sO2}, s{sO2}, s{sSTEP}']]
def dma_B(c):
    tag = f'B{c}'
    return [dma(VG, SG, sOB, sW1K, BSLOT[c], tag), dma(VU, SU, sOB, sW1K, BSLOT[c] + 8192, tag) + [f's_add_u32 s{sOB}, s{sOB}, {64*3584}']]
def store4(src, soff, imm=0, tag='st'):
    return Ins(f'buffer_store_dwordx4 {vr(src,4)}, v{L16}, {srd(SWS)}, s{soff} offen offset:{imm} sc1', tag)
def ld4(dst, soff, imm, tag=None):
    return Ins(f'buffer_load_dwordx4 {vr(dst,4)}, v{L16}, {srd(SWS)}, s{soff} offen offset:{imm} sc1', tag)

def zipl(A, B):
    o = []; n = max(len(A), len(B))
    for i in range(n):
        o += A[(len(A)*i)//n:(len(A)*(i+1))//n] + B[(len(B)*i)//n:(len(B)*(i+1))//n]
    return o
def setup():
    L = []; e = L.append
    e('s_cmp_ge_u32 s2, 256'); e('s_cbranch_scc1 L_end')
    if OPT['stamps']: e(f's_memrealtime s[{T2}:{T3}]'); e(CLK + ' s[100:101]')
    e(f's_load_dwordx4 s[{SX}:{SX+3}], s[0:1], 0'); e(f's_load_dwordx4 s[{SG}:{SG+3}], s[0:1], 32')
    e(f'v_lshrrev_b32 v1, 6, v0'); e(f'v_bfe_u32 v2, v0, 3, 3'); e(f'v_readfirstlane_b32 s{sW}, v1')
    S = []; a = S.append
    a(f's_bfe_u32 s{T0}, s2, {3 | 3 << 16:#x}'); a(f's_and_b32 s{T1}, s2, 1'); a(f's_lshl3_add_u32 s{sRB}, s{T1}, s{T0}')
    a(f's_bfe_u32 s{T0}, s2, {1 | 2 << 16:#x}'); a(f's_lshr_b32 s{sKIND}, s2, 6'); a(f's_lshl2_add_u32 s{sCB}, s{sKIND}, s{T0}')
    a(f's_mul_i32 s{sOX}, s{sRB}, {128*896}')
    a(f's_lshl_b32 s{sW2K}, s{sW}, 11'); a(f's_lshl_b32 s{sW1K}, s{sW}, 10')
    tbl = sum(v << (4 * i) for i, v in enumerate([0, 5, 8, 13, 3, 4, 11, 12]))
    a(f's_lshl_b32 s{T0}, s{sCB}, 2'); a(f's_lshr_b32 s{T0}, {tbl:#x}, s{T0}'); a(f's_and_b32 s{T0}, s{T0}, 15')
    a(f's_add_u32 s{T1}, s{sCB}, 8'); a(f's_cmp_ge_u32 s{sCB}, 8'); a(f's_cselect_b32 s{sP0}, s{T1}, s{T0}')
    a(f's_mul_i32 s{sO0}, s{sP0}, 112'); a(f's_lshl_b32 s{sOB}, s{sCB}, 7')
    a(f's_add_u32 s{T0}, s{sOB}, {12*128}'); a(f's_add_u32 s{T1}, s{sO0}, 112'); a(f's_add_u32 s{T4}, s{sO0}, 224')
    a(f's_mov_b32 s{SI0+2}, {448*2688}'); a(f's_mov_b32 s{SI0+3}, 0x20000'); a(f's_mov_b32 s{SU+2}, {448*3584}'); a(f's_mov_b32 s{SU+3}, 0x20000')
    a(f's_cmp_eq_u32 s{sKIND}, 0')
    a(f's_cselect_b32 s{sO1}, s{T1}, s{T0}'); a(f's_cselect_b32 s{sO2}, s{T4}, s{T0}')
    a(f's_cselect_b32 s{SI1+2}, s{SI0+2}, s{SU+2}'); a(f's_cselect_b64 vcc, -1, 0')
    a(f's_mov_b32 s{SI1+3}, 0x20000'); a(f's_mov_b32 s{SI2+2}, s{SI1+2}'); a(f's_mov_b32 s{SI2+3}, 0x20000')
    V = []; v = V.append
    v(f'v_and_b32 v3, 7, v0'); v(f'v_lshrrev_b32 v4, 1, v2'); v(f'v_xor_b32 v4, v4, v3')
    v(f'v_lshl_add_u32 v5, v1, 4, v2'); v(f'v_mul_u32_u24 v5, 896, v5')
    v(f'v_lshl_add_u32 v{VX[0]}, v4, 4, v5'); v(f'v_xor_b32 v4, 64, v{VX[0]}'); v(f'v_add_u32 v{VX[1]}, {8*896}, v4')
    v(f'v_lshrrev_b32 v4, 2, v0'); v(f'v_and_b32 v4, 4, v4'); v(f'v_xor_b32 v4, v4, v3')
    v(f'v_lshrrev_b32 v5, 3, v0')
    v(f'v_mul_u32_u24 v6, 2688, v5'); v(f'v_lshl_add_u32 v6, v4, 4, v6'); v(f'v_and_b32 v7, 4, v4'); v(f'v_lshlrev_b32 v7, 1, v7'); v(f'v_sub_u32 v{VI[0]}, v6, v7')
    v(f'v_mul_u32_u24 v6, 3584, v5'); v(f'v_lshl_add_u32 v{VG}, v4, 4, v6'); v(f'v_xor_b32 v{VU}, 32, v{VG}')
    v(f'v_and_b32 v{LANE}, 63, v0')
    L += zipl(S, V)
    e(f'v_cndmask_b32 v{VI[1]}, v{VG}, v{VI[0]}, vcc'); e(f'v_cndmask_b32 v{VI[2]}, v{VU}, v{VI[0]}, vcc')
    g0 = dma_A(0)
    e(f's_mov_b32 m0, s{sW2K}')
    e('s_waitcnt lgkmcnt(0)')
    if OPT['stamps']:
        e(f's_mov_b32 s3, s{T2}'); e(f's_mov_b32 s{sST}, s100')
    if OPT['startst']: L.extend(stamp(3))
    e(f's_mov_b64 s[{SI0}:{SI0+1}], s[{SX+2}:{SX+3}]'); e(f's_mov_b32 s{SX+2}, {2048*896}'); e(f's_mov_b32 s{SX+3}, 0x20000')
    L += g0[0][1:]
    e(f's_cselect_b64 s[{SI1}:{SI1+1}], s[{SI0}:{SI0+1}], s[{SG}:{SG+1}]'); e(f's_cselect_b64 s[{SI2}:{SI2+1}], s[{SI0}:{SI0+1}], s[{SG+2}:{SG+3}]')
    e(f's_mov_b32 s{T0}, {64*3584}'); e(f's_cselect_b32 s{sSTEP}, {64*2688}, s{T0}')
    L += [g0[1][0], f's_mov_b64 s[{SU}:{SU+1}], s[{SG+2}:{SG+3}]', g0[1][1], g0[2][0], g0[1][2], g0[2][1], g0[3][0], g0[2][2], g0[3][1], g0[4][0], g0[3][2]] + g0[4][1:]
    if OPT['startst']: L.extend(stamp(4))
    for b, off in ((SWS, 72), (SD, 48), (SWO, 16), (SOUT, 56)): e(f's_load_dwordx2 s[{b}:{b+1}], s[0:1], {off}')
    S = []; a = S.append
    a(f's_lshr_b32 s{sCG}, s{sW}, 2'); a(f's_and_b32 s{sRG}, s{sW}, 3')
    a(f's_mul_i32 s{T0}, s{sRG}, {4096+32}')
    a(f's_lshl_b32 s{T1}, s{sCG}, 6'); a(f's_lshl_b32 s{T4}, s{sRG}, 11'); a(f's_or_b32 s{T1}, s{T1}, s{T4}')
    L += S
    S = []; a = S.append
    a(f's_and_b32 s{sXCD}, s2, 7'); a(f's_lshr_b32 s{sIDX}, s2, 3')
    for b, n in ((SG, 448*3584), (SWS, WS_END), (SD, 1792*896), (SWO, 448*896), (SOUT, 2048*896)):
        a(f's_mov_b32 s{b+2}, {n}'); a(f's_mov_b32 s{b+3}, 0x20000')
    a(f's_mov_b32 s{sMASK}, 0xffff0000'); a(f's_mov_b32 s{sHI}, 0'); a(f's_mov_b32 s{sHI+1}, -1')
    a(f's_lshl2_add_u32 s{sM}, s{sRB}, s{sRG}')
    if OPT['stamps']:
        for i in range(1, 10):
            if not (OPT['startst'] and i in (3, 4)): a(f's_mov_b32 s{sST+i}, 0')
    V = []; v = V.append
    v(f'v_and_b32 v2, 31, v0'); v(f'v_bfe_u32 v3, v0, 5, 1')
    v(f'v_bfe_u32 v4, v0, 1, 3'); v(f'v_xor_b32 v4, v4, v3'); v(f'v_lshlrev_b32 v4, 4, v4')
    v(f'v_lshl_add_u32 v4, v2, 7, v4'); v(f'v_xor_b32 v{AX[0]}, s{T0}, v4')
    v(f'v_bfe_u32 v4, v0, 2, 2'); v(f'v_and_b32 v5, 11, v0'); v(f'v_lshlrev_b32 v5, 3, v5'); v(f'v_lshl_add_u32 v5, v4, 7, v5')
    v(f'v_bfe_u32 v6, v0, 4, 1'); v(f'v_lshl_add_u32 v5, v3, 10, v5'); v(f'v_lshl_add_u32 v5, v6, 5, v5'); v(f'v_xor_b32 v5, s{T1}, v5')
    v(f'v_add_u32 v{AW[0][0]}, {LI[0]}, v5')
    v(f'v_mul_u32_u24 v7, {LI[2]-LI[1]}, v6'); v(f'v_add_u32 v9, {LI[1]}, v5'); v(f'v_add_u32 v7, v7, v9'); v(f'v_xor_b32 v8, 32, v7')
    v(f'v_add_u32 v10, {LI[2]}, v5')
    v(f'v_cndmask_b32 v{AW[1][0]}, v7, v9, vcc'); v(f'v_cndmask_b32 v{AW[2][0]}, v8, v10, vcc')
    v(f'v_lshl_add_u32 v{ABW[0][0]}, v6, 13, v5')
    v(f'v_bfe_u32 v5, v0, 4, 2'); v(f'v_cmp_eq_u32 vcc, v4, v5'); v(f'v_mov_b32 v7, 0x3f803f80')
    for s in (1, 2, 3):
        v(f'v_xor_b32 v{AX[s]}, {32*s}, v{AX[0]}')
        for A in AW: v(f'v_xor_b32 v{A[s]}, {2048*s}, v{A[0]}')
    for r in range(4): v(f'v_cndmask_b32 v{SEL+r}, 0, v7, vcc')
    for r in (S1, S2): v(f'v_mov_b32 v{r}, 0')
    L += zipl(S, V)
    if OPT['startst']: L.extend(stamp(5))
    e('s_waitcnt lgkmcnt(0)')
    e(f's_load_dword s{sTAG}, s[{SWS}:{SWS+1}], {WS_NONCE}')
    if OPT['touch']:
        e('s_getpc_b64 s[10:11]'); e('L_pc:')
        e(f'v_and_b32 v2, 1, v0'); e(f'v_lshl_add_u32 v2, v1, 1, v2'); e(f's_lshl_b32 s{T0}, s{sIDX}, 4'); e(f'v_add_u32 v2, s{T0}, v2')
        e(f'v_lshlrev_b32 v2, 7, v2'); e(f'v_min_u32 v2, L_end-L_pc, v2'); e(f'global_load_dword v{TMPV}, v2, s[10:11]')
    for g in dma_A(1)[:OPT['a1pre']]: L.extend(g)
    if OPT['startst']: L.extend(stamp(7) + [WaitTag('A0')] + stamp(8))
    e('s_waitcnt lgkmcnt(0)')
    return L

def late_setup():
    L = []; e = L.append
    e(f's_add_u32 s{sTAG}, s{sTAG}, {TAGK:#x}')
    e(f'v_lshlrev_b32 v{L16}, 4, v{LANE}')
    e(f'v_add_u32 v{ABW[0][0]}, {BWIN_HI}, v{ABW[0][0]}'); e(f'v_xor_b32 v{ABW[1][0]}, 32, v{ABW[0][0]}')
    for A in ABW:
        for s in (1, 2, 3): e(f'v_xor_b32 v{A[s]}, {2048*s}, v{A[0]}')
    for r in (CB_ + 2, CB_ + 3, CA_ + 2, CA_ + 3): e(f'v_mov_b32 v{r}, 0')
    e(f's_mul_i32 s{T0}, s{sCG}, 3072'); e(f's_add_u32 s{T0}, s{T0}, {LC}'); e(f'v_add_u32 v{CAD}, s{T0}, v{L16}')
    for r in range(4): e(f'v_mov_b32 v{76+r}, -1')
    e(f's_lshl_b32 s{T0}, s{sM}, 4'); e(f's_add_u32 s{T0}, s{T0}, s{sCB}'); e(f's_lshl_b32 s{T0}, s{T0}, 1'); e(f's_add_u32 s{T0}, s{T0}, s{sCG}')
    e(f's_lshl_b32 s{T0}, s{T0}, 10'); e(f's_add_u32 s{T0}, s{T0}, {WS_O}')
    L.append(store4(76, T0, 0, 'po'))
    qs = (28 ** -0.5) * math.log2(math.e)
    e([f's_cmp_lt_u32 s{sP0}, 8', f's_cselect_b32 s{sSCALE}, {f2u(qs):#x}, 1.0'])
    e(f's_lshl_b32 s{T0}, s{sP0}, 1'); e(f's_add_u32 s{T0}, s{T0}, s{sCG}')
    e(f's_lshl_b32 s{T1}, s{T0}, 17'); e(f's_lshl_b32 s{T2}, s{sM}, 11'); e(f's_add_u32 s{T1}, s{T1}, s{T2}')
    for I in range(3): e(f's_add_u32 s{sQO[I]}, s{T1}, {WS_QKV + I*2*131072}')
    e(f's_mul_i32 s{T1}, s{sM}, 28'); e(f's_add_u32 s{T1}, s{T1}, s{sCB}'); e(f's_lshl_b32 s{T1}, s{T1}, 1'); e(f's_add_u32 s{T1}, s{T1}, s{sCG}')
    e(f's_lshl_b32 s{T1}, s{T1}, 11'); e(f's_add_u32 s{sHB}, s{T1}, {WS_H}'); e(f's_add_u32 s{sHA}, s{sHB}, {12*4096}')
    e(f's_lshl_b32 s{T0}, s{sRB}, 4'); e(f's_add_u32 s{T0}, s{T0}, s{sCB}'); e(f's_lshl_b32 s{T0}, s{T0}, 5'); e(f's_add_u32 s{T0}, s{T0}, s{sW}')
    e(f's_lshl_b32 s{T0}, s{T0}, 2'); e(f's_add_u32 s{sFL}, s{T0}, {WS_F1}')
    return L

def tr2(b, ar, off, step=512):
    return [f'ds_read_b64_tr_b16 v[{b}:{b+1}], v{ar} offset:{off}', f'ds_read_b64_tr_b16 v[{b+2}:{b+3}], v{ar} offset:{off+step}']
def xread(ks):
    return f'ds_read_b128 {vr(XF+4*ks,4)}, v{AX[ks & 3]} offset:{LX + ((ks >> 2) % 3)*16384}'
def wreads_A(ks):
    return [tr2(WF[ks & 1] + 4*t, AW[t][ks & 3], ((ks >> 2) % 3) * 8192) for t in range(3)]
BWIN_HI = LI[1] + 8192
def bwin(c): return BWIN_HI if BSLOT[c] >= BWIN_HI else 0
def reads_B(ks):
    c, s = ks >> 2, ks & 3
    return flat([tr2(WF[ks & 1] + 4*t, ABW[t][s], BSLOT[c] - bwin(c)) for t in range(2)])
def rebase_B(ks):
    c, s = ks >> 2, ks & 3
    if c == 6 or bwin(c + 1) == bwin(c): return []
    d = bwin(c + 1) - bwin(c)
    return [f"{'v_add_u32' if d > 0 else 'v_subrev_u32'} v{ABW[t][s]}, {abs(d)}, v{ABW[t][s]}" for t in range(2)]
def stat_dot(kss):
    L = []
    for ks in kss:
        for i in range(4):
            x = XF + 4*ks + i
            L += [f'v_dot2c_f32_bf16 v{S2}, v{x}, v{x}', f'v_dot2c_f32_bf16 v{S1}, v{ST[3]}, v{x}']
    return L
def stat_ops(ks):
    L = []
    for i in range(4):
        a, b = ST[(2*i) % 4], ST[(2*i + 1) % 4]; x = XF + 4*ks + i
        L += [f'v_and_b32 v{a}, s{sMASK}, v{x}', f'v_lshlrev_b32 v{b}, 16, v{x}', f'v_add_f32 v{S1}, v{S1}, v{a}', f'v_fmac_f32 v{S2}, v{a}, v{a}',
              f'v_add_f32 v{S1}, v{S1}, v{b}', f'v_fmac_f32 v{S2}, v{b}, v{b}']
    return L
def cpub(n, tmp):
    L = [f's_lshl_b32 s{T0}, s{sRG}, 2', f'v_add_u32 v{tmp}, s{T0}, v{CAD}']
    return L, [f'ds_write_b32 v{tmp}, v{CACC[i]} offset:{i*1024}' for i in range(n)]

def pass_A(cg):
    L = [WaitTag('A0'), 's_barrier'] + stamp(1)
    L += [xread(0)] + flat(wreads_A(0))
    fill = {i: [] for i in range(84)}; rd = {i: [] for i in range(84)}; cm = {i: [] for i in range(84)}; dslot = {i: [] for i in range(84)}
    for ks in range(28):
        c, s = ks >> 2, ks & 3
        if ks < 27:
            w = wreads_A(ks + 1)
            xs = [ks + 1] if c < 6 or s == 3 else ([25, 26] if s == 0 else [27] if s == 1 else [])
            xr = [xread(k) for k in xs]
            rd[3*ks] = xr[:1] + w[0]; rd[3*ks + 1] = w[1]; rd[3*ks + 2] = w[2] + xr[1:]
        else:
            rd[3*ks] = reads_B(0)
        if s < 3 and not OPT['noc']: cm[3*ks + s] = [mfma16(CACC[s], SEL, WF[ks & 1] + 4*s, c == 0)]
    if not OPT['nostat']:
        for c in range(7):
            if c < 6:
                own = [(4*c + cg, 3*(4*c + cg), 6), (4*c + 2 + cg, 3*(4*c + 2 + cg), 6)]
            else:
                own = [(24, 72, 4), (26, 76, 4)] if cg == 0 else [(25, 75, 2), (27, 77, 3)]
            if OPT['sdot']:
                pos = 12*c + 8 + 3*cg if c < 6 else 78
                fill[pos] += stat_dot([k for k, _, _ in own]); continue
            for k, s0, n in own:
                for i, part in enumerate(split(stat_ops(k), n)): fill[min(s0 + i, 83)] += part
    for i, part in enumerate(split(late_setup(), 48)): fill[12 + i] += flat(part)
    pa, pw = cpub(3, ST[2])
    a = ST[0]
    fill[80] += [f'v_and_b32 v{a}, 31, v{LANE}', f'v_lshrrev_b32 v{ST[1]}, 5, v{LANE}', f'v_lshlrev_b32 v{a}, 4, v{a}', f'v_permlane32_swap_b32 v{S1}, v{S2}',
                 f'v_lshl_add_u32 v{a}, v{ST[1]}, 3, v{a}', f's_lshl_b32 s{T1}, s{sRG}, 9', f's_add_u32 s{T1}, s{T1}, {LST + 4*cg}',
                 f'v_add_f32 v{S1}, v{S1}, v{S2}', f'v_add_u32 v{a}, s{T1}, v{a}'] + pa
    fin = pw + [f'ds_write_b32 v{a}, v{S1}']
    def spread(groups, first, nslots):
        for i, g in enumerate(groups): dslot[first + cg * OPT['dshift'] + (i * nslots) // len(groups)] += g
    NS = OPT['dspread']
    spread(dma_A(1)[OPT['a1pre']:] + dma_A(2), 0, 9)
    for c in range(4): spread(dma_A(c + 3), 3 * (4*c + 3) + 1, NS)
    spread(dma_B(0) + dma_B(1) + dma_B(2), 3 * 19 + 1, 11)
    spread(dma_B(3) + dma_B(4), 3 * 23 + 1, 6)
    for ks in range(28):
        c, s = ks >> 2, ks & 3
        for t in range(3):
            sl = 3*ks + t
            dd = [] if OPT['nodma'] else dslot[sl]
            L += dd[:1]
            L.append(mfma(ACCA[t], WF[ks & 1] + 4*t, XF + 4*ks, None if ks == 0 else ACCA[t]))
            if t == 0 and s == 3:
                if c == 6: L += fin
                L += [WaitTag(f'A{c+1}') if c < 6 else WaitTag('B0', 'B1', 'B2'), WaitLgkm0(), 's_barrier']
                if OPT['chunkst'] and not OPT['startst']: L += stamp(3 + c)
                if OPT['startst'] and c == 0: L += stamp(9)
            if OPT['vprio'] and fill[sl]: fill[sl] = ['s_setprio 0'] + fill[sl] + ['s_setprio 1']
            if sl == 80: L += rd[sl] + dd[1:] + cm[sl] + fill[sl]
            elif OPT['vfirst'] and not (t == 0 and s == 3): L += (cm[sl] + fill[sl] + rd[sl] + dd[1:]) if OPT['cpos'] else (fill[sl] + rd[sl] + dd[1:] + cm[sl])
            else: L += rd[sl] + dd[1:] + fill[sl] + cm[sl]
    return L

def stats():
    a, b, c, d = UT
    return [f'v_and_b32 v{a}, 31, v{LANE}', f's_lshl_b32 s{T0}, s{sRG}, 9', f's_add_u32 s{T0}, s{T0}, {LST}',
            f'v_lshl_add_u32 v{a}, v{a}, 4, s{T0}', f'ds_read_b128 {vr(a,4)}, v{a}',
            f'v_add_f32 v{b}, v{a}, v{b}', f'v_add_f32 v{RS2}, v{c}, v{d}',
            f'v_mul_f32 v{b}, {f2u(-1.0/448):#x}, v{b}',
            f'v_mul_f32 v{RS2}, {f2u(1.0/448):#x}, v{RS2}',
            f'v_and_b32 v{c}, s{sMASK}, v{b}',
            f'v_fma_f32 v{RS2}, -v{b}, v{b}, v{RS2}',
            f'v_sub_f32 v{d}, v{b}, v{c}',
            f'v_max_f32 v{RS2}, 0, v{RS2}',
            f'v_cvt_pk_bf16_f32 v{CB_}, v{c}, v{c}', f'v_add_f32 v{RS2}, {f2u(1e-5):#x}, v{RS2}',
            f'v_cvt_pk_bf16_f32 v{CB_+1}, v{d}, v{CB_+2}',
            f'v_rsq_f32 v{RSTD}, v{RS2}']
def stats2():
    return [f'v_mul_f32 v{RS2}, v{RSTD}, v{RSTD}', f'v_mul_f32 v{RSTD}, s{sSCALE}, v{RSTD}']
def cread(dst, t): return [f'ds_read_b128 {vr(dst,4)}, v{CAD} offset:{t*1024}']
def correct(acc, r, pad=()):
    return [f'v_add_f32 v{r}, v{r}, v{r+1}', f'v_add_f32 v{r+2}, v{r+2}, v{r+3}', f'v_add_f32 v{r}, v{r}, v{r+2}',
            f'v_and_b32 v{r+1}, s{sMASK}, v{r}', f'v_lshrrev_b32 v{CA_+1}, 16, v{r}', f'v_sub_f32 v{r+2}, v{r}, v{r+1}',
            f'v_cvt_pk_bf16_f32 v{CA_}, v{r+1}, v{r+2}'] + list(pad) + [mfma(acc, CA_, CB_, acc)]
def head_half(acc, h, isv):
    L = [f'v_mul_f32 v{acc+8*h+i}, v{RSTD}, v{acc+8*h+i}' for i in range(8)]
    L += [f'v_cvt_pk_bf16_f32 v{acc+4*h+i}, v{acc+8*h+2*i}, v{acc+8*h+2*i+1}' for i in range(4)]
    if h == 1:
        if isv: L += [f'v_mov_b32 v{acc+8}, 0x3f80', f'v_cndmask_b32 v{acc+6}, v{acc+6}, v{acc+8}, s[{sHI}:{sHI+1}]']
        else: L += [f'v_cndmask_b32 v{acc+6}, v{acc+6}, 0, s[{sHI}:{sHI+1}]']
        L += [f'v_cndmask_b32 v{acc+7}, v{acc+7}, 0, s[{sHI}:{sHI+1}]']
    return L
def epi_T(acc, I):
    return head_half(acc, 0, False) + [store4(acc, sQO[I], 0)] + head_half(acc, 1, False) + [store4(acc + 4, sQO[I], 1024)]
def v_addr():
    a, b, c, d = UT
    return [f'v_and_b32 v{a}, 31, v{LANE}', f'v_lshrrev_b32 v{b}, 5, v{LANE}', f'v_bfe_u32 v{c}, v{LANE}, 1, 3', f'v_xor_b32 v{c}, v{b}, v{c}',
            f'v_lshlrev_b32 v{c}, 3, v{c}', f'v_lshl_add_u32 v{a}, v{a}, 6, v{c}', f'v_add_u32 v{a}, s{sW2K}, v{a}',
            f'v_bfe_u32 v{c}, v{LANE}, 2, 2', f'v_lshl_add_u32 v{c}, v{b}, 2, v{c}',
            f'v_bfe_u32 v{b}, v{LANE}, 4, 1', f'v_and_b32 v{d}, 3, v{LANE}', f'v_lshl_add_u32 v{b}, v{b}, 2, v{d}',
            f'v_lshrrev_b32 v{d}, 1, v{c}', f'v_xor_b32 v{b}, v{b}, v{d}', f'v_lshlrev_b32 v{b}, 3, v{b}', f'v_lshl_add_u32 v{c}, v{c}, 6, v{b}',
            f'v_add_u32 v{c}, s{sW2K}, v{c}', f'v_xor_b32 v{d}, 32, v{c}']
def epi_V(acc):
    a, b, c, d = UT
    L = head_half(acc, 0, True) + [f'ds_write_b64 v{a}, {vr(acc,2)} offset:{LVT}', f'v_xor_b32 v{b}, 16, v{a}', f'ds_write_b64 v{b}, {vr(acc+2,2)} offset:{LVT}']
    L += head_half(acc, 1, True) + [f'v_xor_b32 v{a}, 32, v{a}', f'v_xor_b32 v{b}, 32, v{b}',
                                    f'ds_write_b64 v{a}, {vr(acc+4,2)} offset:{LVT}', f'ds_write_b64 v{b}, {vr(acc+6,2)} offset:{LVT}']
    L += [f'ds_read_b64_tr_b16 {vr(acc+8+2*i,2)}, v{d if i & 1 else c} offset:{LVT + 512*i}' for i in range(4)]
    return L, [store4(acc + 8, sQO[0], 0), store4(acc + 12, sQO[0], 1024)]
def epi_gu(acc):
    L = []
    for i in range(8):
        L += [f'v_max_f32 v{acc+i}, 0, v{acc+i}', f'v_mul_f32 v{acc+8+i}, v{RS2}, v{acc+8+i}', f'v_mul_f32 v{acc+i}, v{acc+i}, v{acc+8+i}']
    return L + [f'v_cvt_pk_bf16_f32 v{acc+i}, v{acc+2*i}, v{acc+2*i+1}' for i in range(4)]
def set_flag(second):
    L = [f's_add_u32 s{sFL}, s{sFL}, {WS_F2 - WS_F1}'] if second else []
    return L + [f'v_mov_b32 v{TMPV}, s{sTAG}', 's_mov_b64 exec, 1',
                Ins(f'buffer_store_dword v{TMPV}, v{L16}, {srd(SWS)}, s{sFL} offen sc1', 'flag'), 's_mov_b64 exec, -1']
def epi_A(kind):
    E = cread(CR, 0) + cread(CR2, 1) + stats() + correct(ACCA[0], CR, stats2()) + cread(CR, 2)
    if kind == 'Y':
        E += correct(ACCA[1], CR2) + epi_T(ACCA[0], 0) + correct(ACCA[2], CR) + epi_T(ACCA[1], 1) + epi_T(ACCA[2], 2)
    elif kind == 'T':
        E += correct(ACCA[1], CR2) + epi_T(ACCA[0], 0) + correct(ACCA[2], CR) + epi_gu(ACCA[1]) + epi_gu(ACCA[2])
    else:
        v, st = epi_V(ACCA[0])
        E += v_addr() + v + correct(ACCA[1], CR2) + st + correct(ACCA[2], CR) + epi_gu(ACCA[1]) + epi_gu(ACCA[2])
    return E

def pass_B(k0, k1, filler=(), nfill=None, extra=None):
    extra = extra or {}
    L = []
    nfill = nfill or 2 * (k1 - k0)
    f = split(list(filler), nfill) + [[]] * (2 * (k1 - k0) - nfill)
    pa, pw = cpub(2, UT[0])
    for ks in range(k0, k1):
        c, s = ks >> 2, ks & 3
        for t in range(2):
            sl = 2*ks + t
            ex = extra.get(sl, [])
            pre = ex[:1] if ex and isinstance(ex[0], str) and ' m0,' in ex[0] else []
            L += pre
            L.append(mfma(ACCB[t], WF[ks & 1] + 4*t, XF + 4*ks, None if ks == 0 else ACCB[t]))
            if t == 0 and ks == 11: L += [WaitTag('B3', 'B4'), 's_barrier']
            if t == 0 and ks == 19: L += [WaitTag('B5', 'B6'), 's_barrier']
            if t == 0 and ks == 27: L += pw + [WaitLgkm0(), 's_barrier'] + cread(CR, 0) + cread(CR2, 1)
            ff = flat(f[2 * (ks - k0) + t])
            if OPT['vprio'] and ff: ff = ['s_setprio 0'] + ff + ['s_setprio 1']
            if OPT['vfirst'] > 1: L += ff; ff = []
            if t == 0 and ks < 27: L += reads_B(ks + 1)
            L += ex[len(pre):] + ff
            if t == 1: L += rebase_B(ks)
            if sl == 53: L += pa
            if s == 2*t and not OPT['noc']: L.append(mfma16(CACC[t], SEL, WF[ks & 1] + 4*t, c == 0))
    return L
def epi_B():
    E = [WaitLgkm0(), 's_barrier'] + correct(ACCB[0], CR) + correct(ACCB[1], CR2)
    E += epi_gu(ACCB[0]) + [store4(ACCB[0], sHB, 0)] + epi_gu(ACCB[1]) + [store4(ACCB[1], sHB, 1024)]
    return E

QF = 128; OA = 0; NB = 4
KF = [160, 176, 192, 208]; VF = [168, 184, 200, 216]
SB = [64, 80]; PB = [96, 104]; EB = 112; AR = 120
sHD, sQB, sKO, sVO, sOO = 66, 67, 68, 69, 70
sKT = 20
PA, PV_ = 4, 5
def poll(addr, label, tmp):
    return [f's_mov_b32 s{T5}, 0', f'{label}:',
            f'buffer_load_dword v{tmp}, v{addr}, {srd(SWS)}, 0 offen sc1', f's_add_u32 s{T5}, s{T5}, 1', 's_waitcnt vmcnt(0)',
            f'v_cmp_ne_u32 vcc, s{sTAG}, v{tmp}', f's_cmp_lt_u32 s{T5}, 100000', f's_cselect_b64 s[{T2}:{T3}], -1, 0',
            f's_and_b64 vcc, vcc, s[{T2}:{T3}]', f's_cbranch_vccnz {label}']
def attn_pre():
    L = []; e = L.append
    e(f's_lshr_b32 s{T0}, s{sIDX}, 4'); e(f's_lshl_b32 s{sHD}, s{sXCD}, 1'); e(f's_add_u32 s{sHD}, s{sHD}, s{T0}'); e(f's_and_b32 s{sQB}, s{sIDX}, 15')
    tbl = sum(v << (4 * i) for i, v in enumerate([0, 0, 0, 4, 5, 1, 1, 1]))
    e(f's_lshl_b32 s{T1}, s{sXCD}, 2'); e(f's_lshr_b32 s{T1}, {tbl:#x}, s{T1}'); e(f's_and_b32 s{T1}, s{T1}, 15')
    a, b, c = PA, 6, 7
    e(f'v_bfe_u32 v{a}, v{LANE}, 2, 2'); e(f's_lshl_b32 s{T2}, s{sW}, 2'); e(f'v_add_u32 v{a}, s{T2}, v{a}'); e(f'v_mov_b32 v{b}, s{sQB}')
    e(f'v_cndmask_b32 v{a}, v{a}, v{b}, s[{sHI}:{sHI+1}]'); e(f'v_lshlrev_b32 v{a}, 11, v{a}')
    e(f's_add_u32 s{T2}, s{T1}, 2'); e(f's_add_u32 s{T3}, s{sXCD}, 8'); e(f's_lshl_b32 s{T3}, s{T3}, 8'); e(f's_or_b32 s{T2}, s{T2}, s{T3}')
    e(f's_lshl_b32 s{T3}, s{T1}, 16'); e(f's_or_b32 s{T2}, s{T2}, s{T3}'); e(f's_lshl_b32 s{T3}, s{sHD}, 24'); e(f's_or_b32 s{T2}, s{T2}, s{T3}')
    e(f'v_lshrrev_b32 v{b}, 4, v{LANE}'); e(f'v_lshlrev_b32 v{b}, 3, v{b}'); e(f'v_bfe_u32 v{b}, s{T2}, v{b}, 8'); e(f'v_lshl_add_u32 v{a}, v{b}, 7, v{a}')
    e(f'v_cmp_lt_u32 vcc, 47, v{LANE}')
    e(f'v_and_b32 v{b}, 3, v{LANE}'); e(f's_lshl_b32 s{T0}, s{T0}, 2'); e(f'v_add_u32 v{b}, s{T0}, v{b}')
    e(f'v_and_b32 v{c}, 1, v{LANE}'); e(f'v_lshl_add_u32 v{c}, v{c}, 2, s{sW}'); e(f'v_cndmask_b32 v{b}, v{b}, v{c}, vcc')
    e(f'v_lshl_add_u32 v{a}, v{b}, 2, v{a}'); e(f'v_add_u32 v{a}, {WS_F1}, v{a}')
    e(f's_lshl_b32 s{T0}, s{sHD}, 17'); e(f's_add_u32 s{T0}, s{T0}, {WS_QKV}')
    e(f's_lshl_b32 s{T1}, s{sW}, 15'); e(f's_add_u32 s{T1}, s{T0}, s{T1}')
    for p in range(8):
        e(f's_add_u32 s{sKT+p}, s{T1}, {16*131072 + 4096*p}'); e(f's_add_u32 s{sKT+8+p}, s{T1}, {32*131072 + 4096*p}')
    e(f's_lshl_b32 s{T1}, s{sQB}, 13'); e(f's_add_u32 s{T0}, s{T0}, s{T1}')
    for j in range(4):
        e(f's_add_u32 s{T1}, s{sW}, {1+j}'); e(f's_and_b32 s{T1}, s{T1}, 3'); e(f's_mul_i32 s{12+j}, s{T1}, {3*4096}')
        e(f's_lshl_b32 s{T1}, s{T1}, 11'); e(f's_add_u32 s{36+j}, s{T1}, s{T0}'); e(f's_add_u32 s{12+j}, s{12+j}, {LSCR + (j % 3)*4096}')
    e(f's_lshl_b32 s{T0}, s{sQB}, 2'); e(f's_add_u32 s{T0}, s{T0}, s{sW}'); e(f's_lshl_b32 s{T0}, s{T0}, 4'); e(f's_add_u32 s{T0}, s{T0}, s{sHD}')
    e(f's_lshl_b32 s{T0}, s{T0}, 11'); e(f's_add_u32 s{sOO}, s{T0}, {WS_O}')
    return L
def flag_look(): return [f'buffer_load_dword v{PV_}, v{PA}, {srd(SWS)}, 0 offen sc1']
def flag_check():
    return [f'v_cmp_ne_u32 vcc, s{sTAG}, v{PV_}', 's_cbranch_vccz L_qkvok', Cond(True)] + poll(PA, 'L_pollqkv', PV_) + [Cond(False), 'L_qkvok:']
def kv_load(kt):
    imm = 2048 * (kt & 1); b = kt % NB
    return [ld4(KF[b], sKT + (kt >> 1), imm), ld4(KF[b] + 4, sKT + (kt >> 1), imm + 1024),
            ld4(VF[b], sKT + 8 + (kt >> 1), imm), ld4(VF[b] + 4, sKT + 8 + (kt >> 1), imm + 1024)]
def first_loads():
    k0 = kv_load(0)
    L = k0[:2]
    for j in range(4): L += [ld4(QF + 8*j, 36 + j, 0), ld4(QF + 8*j + 4, 36 + j, 1024)]
    L = L[:6] + k0[2:] + L[6:]
    for kt in range(1, NB - 1): L += kv_load(kt)
    return L
def attn_main():
    L = []
    NT = 64
    K = lambda i: KF[(i >> 2) % NB]; V = lambda i: VF[(i >> 2) % NB]
    Q = lambda i: QF + 8 * (i & 3); O = lambda i: OA + 16 * (i & 3)
    S = lambda i: SB[i & 1]; P = lambda i: PB[i & 1]
    qka = lambda i: mfma(S(i), K(i), Q(i), None)
    qkb = lambda i: mfma(S(i), K(i) + 4, Q(i) + 4, S(i))
    pva = lambda i: mfma(O(i), V(i), P(i), None if i < 4 else O(i))
    pvb = lambda i: mfma(O(i), V(i) + 4, P(i) + 4, O(i))
    ex = lambda i, g: [f'v_exp_f32 v{EB + (4*g + j) % 8}, v{S(i) + 4*g + j}' for j in range(4)]
    cv = lambda i, g: [f'v_cvt_pk_bf16_f32 v{P(i) + 2*g + j}, v{EB + (4*g + 2*j) % 8}, v{EB + (4*g + 2*j + 1) % 8}' for j in range(2)]
    L += [qka(0), qkb(0)] + [f'v_add_u32 v{AR+j}, s{12+j}, v{L16}' for j in range(4)] + [f's_mov_b64 s[{T4}:{T5}], -1', f's_mov_b32 s{T0}, {f2u(2.0**60):#x}']
    for i in range(NT + 1):
        kt, j = i >> 2, i & 3
        extra = [[], [], [], []]
        if i < NT and kt + NB - 1 < 16 and j == 1:
            for q, x in enumerate(kv_load(kt + NB - 1)): x.tag = f'KV{kt+NB-1}'; extra[q] = [x]
        if i == 8: extra[0] = [WaitTag('st')] + set_flag(True)
        if i - 2 >= NT - 4 and i - 2 < NT - 1:
            jj = (i - 2) & 3
            for q in range(4): extra[q] = [f'ds_write_b128 v{AR+jj}, {vr(OA + 16*jj + 4*q, 4)} offset:{1024*q}']
        if j == 3 and kt + 1 >= NB - 1: L.append(WaitTag(f'KV{kt+1}'))
        if i + 1 < NT: L.append(qka(i + 1))
        L += extra[0]
        if i > 0: L += cv(i - 1, 3)
        if i < NT: L += ex(i, 0)
        if i + 1 < NT: L.append(qkb(i + 1))
        L += extra[1]
        if i < NT: L += cv(i, 0) + ex(i, 1)
        if i > 0: L.append(pvb(i - 1))
        L += extra[2]
        if i < NT: L += cv(i, 1) + ex(i, 2)
        if i < NT: L.append(pva(i))
        L += extra[3]
        if i < NT: L += cv(i, 2) + ex(i, 3)
    L += stamp(4)
    L += [WaitLgkm0(), 's_barrier']
    own = OA + 48
    for q in (3, 0, 1, 2):
        L += [f'ds_read_b128 {vr(OA + 16*j + 4*q, 4)}, v{AR+3} offset:{4096*j + 1024*q}' for j in range(3)]
    for q in (3, 0, 1, 2):
        for j in range(3): L += [f'v_add_f32 v{own+4*q+r}, v{own+4*q+r}, v{OA + 16*j + 4*q + r}' for r in range(4)]
    return L
def attn_finish():
    own = OA + 48
    a, b = 124, 125
    L = ['L_fin:',
         f'v_mov_b32 v{a}, v{own+12}', f'v_mov_b32 v{b}, v{own+12}', f'v_permlane32_swap_b32 v{a}, v{b}',
         f'v_rcp_f32 v{a}, v{b}',
         f'v_cmp_nle_f32 vcc, {f2u(2.0**-40):#x}, v{b}', f'v_cmp_nle_f32 s[{T2}:{T3}], v{b}, s{T0}']
    L += [f'v_mul_f32 v{EB+r}, v{a}, v{own+r}' for r in range(8)]
    L += [f's_or_b64 vcc, vcc, s[{T2}:{T3}]', f's_and_b64 vcc, vcc, s[{T4}:{T5}]', 's_cbranch_vccnz L_slow']
    L += [f'v_cvt_pk_bf16_f32 v{own+i}, v{EB+2*i}, v{EB+2*i+1}' for i in range(4)] + [store4(own, sOO, 0)]
    L += [f'v_mul_f32 v{own+r}, v{a}, v{own+r}' for r in range(8, 16)]
    L += [f'v_cvt_pk_bf16_f32 v{own+4+i}, v{own+8+2*i}, v{own+9+2*i}' for i in range(4)]
    L += [f'v_cndmask_b32 v{own+6}, v{own+6}, 0, s[{sHI}:{sHI+1}]', f'v_cndmask_b32 v{own+7}, v{own+7}, 0, s[{sHI}:{sHI+1}]', store4(own + 4, sOO, 1024)]
    L += stamp(5) + dump_stamps() + ['s_endpgm']
    return L
def attn_slow():
    own = OA + 48; Q = QF + 24; S = SB[0]; K = KF[0]; V = VF[0]; P = PB[0]; M = 224
    L = ['L_slow:',
         f's_lshl_b32 s{T2}, s{sHD}, 17', f's_add_u32 s{sKO}, s{T2}, {WS_QKV + 16*131072}', f's_mov_b32 s{T1}, 0', f'v_mov_b32 v{M}, 0xff800000',
         'L_slow1:', ld4(K, sKO, 0), ld4(K + 4, sKO, 1024), 's_waitcnt vmcnt(0)',
         mfma(S, K, Q, None), mfma(S, K + 4, Q + 4, S)]
    L += [f'v_max3_f32 v{M}, v{S+2*i}, v{S+2*i+1}, v{M}' for i in range(8)]
    L += [f's_add_u32 s{sKO}, s{sKO}, 2048', f's_add_u32 s{T1}, s{T1}, 1', f's_cmp_lt_u32 s{T1}, 64', 's_cbranch_scc1 L_slow1',
          f'v_mov_b32 v{M+1}, v{M}', f'v_mov_b32 v{M+2}, v{M}', f'v_permlane32_swap_b32 v{M+1}, v{M+2}', f'v_max_f32 v{M}, v{M+1}, v{M+2}',
          f's_add_u32 s{sKO}, s{T2}, {WS_QKV + 16*131072}', f's_add_u32 s{sVO}, s{sKO}, {16*131072}', f's_mov_b32 s{T1}, 0']
    L += [f'v_mov_b32 v{own+r}, 0' for r in range(16)]
    L += ['L_slow2:', ld4(K, sKO, 0), ld4(K + 4, sKO, 1024), ld4(V, sVO, 0), ld4(V + 4, sVO, 1024), 's_waitcnt vmcnt(0)',
          mfma(S, K, Q, None), mfma(S, K + 4, Q + 4, S)]
    L += [f'v_sub_f32 v{S+r}, v{S+r}, v{M}' for r in range(16)]
    L += [f'v_exp_f32 v{S+r}, v{S+r}' for r in range(16)]
    L += [f'v_cvt_pk_bf16_f32 v{P+i}, v{S+2*i}, v{S+2*i+1}' for i in range(8)]
    L += [mfma(own, V, P, own), mfma(own, V + 4, P + 4, own),
          f's_add_u32 s{sKO}, s{sKO}, 2048', f's_add_u32 s{sVO}, s{sVO}, 2048', f's_add_u32 s{T1}, s{T1}, 1', f's_cmp_lt_u32 s{T1}, 64', 's_nop 7', 's_cbranch_scc1 L_slow2',
          's_nop 15', f's_mov_b64 s[{T4}:{T5}], 0', 's_branch L_fin']
    return L

HACC = 0
HF = 64; NH = 18
HW = [208, 216]
XR = 224
HADDR = dict(VH0=232, VH1=233, VD0=234, VD1=235, AD0=236, AD1=237, AD20=238, AD21=239, AE=240, VXO=241, POL=242, VXI=243)
PREP = {k: 128 + i for i, k in enumerate(HADDR)}
sKQ, sMB, sNB, sHO, sDO, sRB0, sTH, sKH = 66, 67, 68, 69, 70, 71, 75, 76
sE1, sE2, sOF, sWOO, sADJ = 12, 13, 14, 15, 16
sOS = 24
def helper_pre():
    L = []; e = L.append; P = PREP
    a, b, c = 144, 145, 146
    e(f's_sub_u32 s{sKQ}, s{sW}, 4'); e(f's_and_b32 s{sTH}, s{sKQ}, 1'); e(f's_lshr_b32 s{sKH}, s{sKQ}, 1')
    e(f's_and_b32 s{T1}, s{sIDX}, 3'); e(f's_lshl_b32 s{sMB}, s{sXCD}, 2'); e(f's_add_u32 s{sMB}, s{sMB}, s{T1}'); e(f's_lshr_b32 s{sNB}, s{sIDX}, 2')
    e(f's_mul_i32 s{sRB0}, s{sKQ}, {RING}')
    e(f'v_lshrrev_b32 v{a}, 3, v{LANE}'); e(f'v_and_b32 v{b}, 7, v{LANE}'); e(f'v_lshlrev_b32 v{c}, 1, v{a}'); e(f'v_and_b32 v{c}, 4, v{c}'); e(f'v_xor_b32 v{b}, v{b}, v{c}')
    e(f'v_mul_u32_u24 v{a}, 896, v{a}'); e(f"v_lshl_add_u32 v{P['VD0']}, v{b}, 4, v{a}"); e(f"v_add_u32 v{P['VD1']}, {8*896}, v{P['VD0']}")
    e(f's_lshl_b32 s{T1}, s{sNB}, 7')
    e(f's_mul_i32 s{sDO}, s{sKQ}, {448*896}'); e(f's_add_u32 s{sDO}, s{sDO}, s{T1}')
    e(f's_mul_i32 s{sWOO}, s{sKQ}, {112*896}'); e(f's_add_u32 s{sWOO}, s{sWOO}, s{T1}')
    e(f'v_bfe_u32 v{a}, v{LANE}, 2, 2'); e(f'v_bfe_u32 v{b}, v{LANE}, 3, 1'); e(f'v_lshlrev_b32 v{b}, 6, v{b}')
    e(f'v_and_b32 v{c}, 3, v{LANE}'); e(f'v_lshl_or_b32 v{b}, v{c}, 3, v{b}'); e(f'v_lshl_add_u32 v{b}, v{a}, 7, v{b}')
    e(f'v_bfe_u32 v{c}, v{LANE}, 4, 1'); e(f'v_lshlrev_b32 v{c}, 5, v{c}'); e(f'v_xor_b32 v{b}, v{b}, v{c}')
    e(f's_lshl_b32 s{T2}, s{sKH}, 6'); e(f'v_xor_b32 v{b}, s{T2}, v{b}')
    e(f's_add_u32 s{T1}, s{T1}, s{T2}')
    e(f's_mul_i32 s{T2}, s{sKH}, {2*RING}'); e(f"v_add_u32 v{P['AD20']}, s{T2}, v{b}"); e(f"v_xor_b32 v{P['AD21']}, 64, v{P['AD20']}")
    e(f's_sub_u32 s{sADJ}, s{T2}, s{sRB0}')
    e(f'v_lshrrev_b32 v{c}, 5, v{LANE}'); e(f'v_lshl_add_u32 v{b}, v{c}, 9, v{b}')
    e(f"v_add_u32 v{P['AD0']}, s{sRB0}, v{b}"); e(f"v_xor_b32 v{P['AD1']}, 64, v{P['AD0']}")
    e(f's_lshl_b32 s{T2}, s{sMB}, 1'); e(f's_add_u32 s{T2}, s{T2}, s{sTH}'); e(f's_xor_b32 s{T3}, s{T2}, 1')
    e(f's_mul_i32 s{T4}, s{T2}, {112*1024}'); e(f"v_add_u32 v{P['VH0']}, s{T4}, v{L16}"); e(f's_mul_i32 s{T4}, s{T3}, {112*1024}'); e(f"v_add_u32 v{P['VH1']}, s{T4}, v{L16}")
    e(f's_mul_i32 s{sHO}, s{sKQ}, {28*1024}'); e(f's_add_u32 s{sHO}, s{sHO}, {WS_H}')
    e(f'v_and_b32 v{a}, 31, v{LANE}'); e(f's_lshl_b32 s{T4}, s{T2}, 5'); e(f'v_add_u32 v{a}, s{T4}, v{a}'); e(f'v_mul_u32_u24 v{a}, 896, v{a}')
    e(f'v_add_u32 v{a}, s{T1}, v{a}'); e(f"v_lshl_add_u32 v{P['VXI']}, v{c}, 3, v{a}"); e(f"v_lshl_add_u32 v{P['VXO']}, v{c}, 4, v{a}")
    e(f's_lshl_b32 s{T2}, s{T2}, 1'); e(f's_add_u32 s{T2}, s{T2}, s{sKH}'); e(f's_lshl_b32 s{T2}, s{T2}, 14')
    for i in range(4): e(f's_add_u32 s{sOS+i}, s{T2}, {WS_O + 4096*i}')
    e(f's_add_u32 s{T2}, s{sRB0}, {7*2048}'); e(f"v_add_u32 v{P['AE']}, s{T2}, v{L16}")
    e(f's_xor_b32 s{T2}, s{sKQ}, 1'); e(f's_mul_i32 s{T2}, s{T2}, {RING}'); e(f's_add_u32 s{sE1}, s{T2}, {7*2048}')
    e(f's_xor_b32 s{T2}, s{sKQ}, 2'); e(f's_mul_i32 s{T2}, s{T2}, {RING}'); e(f's_add_u32 s{sE2}, s{T2}, {7*2048}')
    e(f'v_and_b32 v{a}, 15, v{LANE}'); e(f'v_lshlrev_b32 v{a}, 7, v{a}'); e(f'v_bfe_u32 v{b}, v{LANE}, 4, 1'); e(f'v_lshl_add_u32 v{a}, v{b}, 2, v{a}')
    e(f'v_lshl_add_u32 v{a}, v{c}, 4, v{a}')
    e(f's_lshr_b32 s{T2}, s{sMB}, 1'); e(f's_lshl_b32 s{T2}, s{T2}, 11'); e(f's_and_b32 s{T3}, s{sMB}, 1'); e(f's_lshl_b32 s{T3}, s{T3}, 3')
    e(f's_add_u32 s{T2}, s{T2}, s{T3}'); e(f's_add_u32 s{T2}, s{T2}, {WS_F2}'); e(f"v_add_u32 v{P['POL']}, s{T2}, v{a}")
    return L
def helper():
    L = []; e = L.append; H = HADDR
    VH = [H['VH0'], H['VH1']]; VD = [H['VD0'], H['VD1']]; AD = [H['AD0'], H['AD1']]; AD2 = [H['AD20'], H['AD21']]
    if OPT['hprio']: e('s_setprio 3')
    L += [f'v_mov_b32 v{H[k]}, v{PREP[k]}' for k in H]
    L += stamp(6)
    e(f's_cmp_ge_u32 s{sIDX}, 28'); e('s_cbranch_scc1 L_idle')
    def wdma(i, s, so, tag):
        return [dma(VD[0], s, so, sRB0, (i % 14) * 2048, tag), dma(VD[1], s, so, sRB0, (i % 14) * 2048 + 1024, tag) + [f's_add_u32 s{so}, s{so}, {16*896}']]
    win = [f's_waitcnt vmcnt({OPT["hwin"]})']
    L += [WaitTag('st')] + set_flag(True)
    if OPT['hprio']: e('s_setprio 0')
    for i in range(4): e(f"buffer_load_dwordx2 {vr(XR+2*i,2)}, v{H['VXI']}, {srd(SX)}, 0 offen offset:{16*i}")
    for i in range(14):
        for g in wdma(i, SD, sDO, f'W{i}'): L += g[:1] + win + g[1:]
    L += [Sync()] + poll(H['POL'], 'L_pollh', TMPV)
    L += stamp(3)
    def hload(i):
        o = [Ins(f'buffer_load_dwordx4 {vr(HF + 8*(i % NH) + 4*mi, 4)}, v{VH[mi]}, {srd(SWS)}, s{sHO} offen offset:{(i%4)*1024} sc1') for mi in range(2)]
        if i % 4 == 3: o.append(f's_add_u32 s{sHO}, s{sHO}, 4096')
        return o
    for i in range(NH):
        h = hload(i); L += win + h[:1] + win + h[1:]
    def wread(i):
        return [WaitTag(f'W{i}')] + flat([tr2(HW[i & 1] + 4*u, AD[u], (i % 14) * 2048, 1024) for u in range(2)])
    OF = HF + 8 * 10
    def oload(f): return ld4(OF + 4*f, sOS + (f >> 2), (f & 3) * 1024, f'O{f >> 1}')
    ok0 = 28 - OPT['okick']
    okick = split([oload(f) for f in range(16)], 4 * OPT['okick']) if OPT['okick'] else []
    L += wread(0)
    for i in range(28):
        if i == OPT['fpoint']: L += ['s_barrier'] + stamp(4)
        mm = [mfma(HACC + 32*mi + 16*u, HW[i & 1] + 4*u, HF + 8*(i % NH) + 4*mi, None if i == 0 else HACC + 32*mi + 16*u) for mi in (1, 0) for u in range(2)]
        x = [wread(i + 1) if i < 27 else [], [], [], []]
        d = [[], []]
        if i + 14 < 28: d = wdma(i + 14, SD, sDO, f'W{i+14}')
        elif i < 21: d = wdma(i, SWO, sWOO, 'WO')
        if i + NH < 28: x[3] = hload(i + NH)
        if i >= ok0:
            for q in range(4): x[q] = x[q] + okick[4 * (i - ok0) + q]
        L += [mm[0]] + x[0] + d[0][:1] + [mm[1]] + d[0][1:] + x[1] + d[1][:1] + [mm[2]] + d[1][1:] + x[2] + [mm[3]] + x[3]
    if not OPT['okick']: L += [oload(f) for f in range(16)]
    a, c, d_ = HF, HF + 1, HF + 2
    L += [f'v_add_u32 v{a}, s{sE1}, v{L16}', f'v_add_u32 v{AD[0]}, s{sADJ}, v{AD[0]}', f'v_add_u32 v{AD[1]}, s{sADJ}, v{AD[1]}']
    L += [f"ds_write_b128 v{H['AE']}, {vr(HACC + 32 + 4*q, 4)} offset:{1024*q}" for q in range(8)]
    for i in range(8):
        L += [f'v_lshlrev_b32 v{c}, 16, v{XR+i}', f'v_and_b32 v{d_}, s{sMASK}, v{XR+i}', f'v_add_f32 v{HACC+2*i}, v{HACC+2*i}, v{c}', f'v_add_f32 v{HACC+2*i+1}, v{HACC+2*i+1}, v{d_}']
    L += stamp(7) + [WaitTag('WO'), WaitLgkm0(), 's_barrier']
    L += [f'ds_read_b128 {vr(HACC + 32 + 4*q, 4)}, v{a} offset:{1024*q}' for q in range(8)]
    def oread(f):
        hd, st = f >> 1, f & 1
        base = (hd >> 2) * RING + ((hd & 3) * 28 + 16 * st) * 128
        o = []
        for u in range(2):
            o.append(f'ds_read_b64_tr_b16 {vr(HW[f&1] + 4*u, 2)}, v{AD[u]} offset:{base}')
            o.append(f'ds_read_b64_tr_b16 {vr(HW[f&1] + 4*u + 2, 2)}, v{AD2[u] if st else AD[u]} offset:{base+1024}')
        return o
    L += oread(0)
    L += [f'v_add_f32 v{HACC+r}, v{HACC+r}, v{HACC+32+r}' for r in range(32)]
    L += [f'v_add_u32 v{a}, s{sE2}, v{L16}', f's_mov_b32 s{T5}, 0']
    retry = []
    def check(h):
        r = OF + 8*h
        o = [f'L_oc{h}:', f's_waitcnt vmcnt({2*(7-h)})', f'v_max_u32 v{c}, v{r}, v{r+1}'] + [f'v_max3_u32 v{c}, v{r+k}, v{r+k+1}, v{c}' for k in (2, 4, 6)]
        o += [f'v_cmp_eq_u32 vcc, -1, v{c}', f's_cbranch_vccnz L_or{h}', f'L_ok{h}:']
        retry.extend([f'L_or{h}:', f's_add_u32 s{T5}, s{T5}, 1', f's_cmp_ge_u32 s{T5}, 50000', f's_cbranch_scc1 L_ok{h}'] +
                     [oload(f) for f in range(2*h, 16)] + [f's_branch L_oc{h}'])
        return o
    L += check(0) + stamp(5)
    for f in range(16):
        L += [mfma(HACC + 16, HW[f & 1] + 4, OF + 4*f, HACC + 16)] + (oread(f + 1) if f < 15 else []) + [mfma(HACC, HW[f & 1], OF + 4*f, HACC)]
        if f % 2 == 0 and f < 14: L += check(f // 2 + 1)
    L += [f"ds_write_b128 v{H['AE']}, {vr(HACC + 16 + 4*q, 4)} offset:{8192 + 1024*q}" for q in range(4)]
    L += [WaitLgkm0(), 's_barrier']
    L += [f'ds_read_b128 {vr(HACC + 16 + 4*q, 4)}, v{a} offset:{8192 + 1024*q}' for q in range(4)]
    for k in range(2):
        L += [f'v_add_f32 v{HACC+r}, v{HACC+r}, v{HACC+16+r}' for r in range(8*k, 8*k + 8)]
        L += [f'v_cvt_pk_bf16_f32 v{HACC+32+4*k+i}, v{HACC+8*k+2*i}, v{HACC+8*k+2*i+1}' for i in range(4)]
        L += [f'v_permlane32_swap_b32 v{HACC+32+4*k}, v{HACC+34+4*k}', f'v_permlane32_swap_b32 v{HACC+33+4*k}, v{HACC+35+4*k}']
        e(f"buffer_store_dwordx4 {vr(HACC+32+4*k,4)}, v{H['VXO']}, {srd(SOUT)}, 0 offen offset:{32*k}")
    if OPT['stamps']: L += [f's_mov_b32 s{sST+9}, s{T5}'] + stamp(8) + dump_stamps()
    e('s_endpgm')
    return L, retry
def idle():
    L = ['L_idle:', 's_waitcnt vmcnt(0)'] + set_flag(True) + ['s_cmp_lg_u32 s2, 255', 's_cbranch_scc1 L_end', f's_cmp_lg_u32 s{sW}, 4', 's_cbranch_scc1 L_end', 's_setprio 0']
    a, b = 200, 201
    L += [f'v_lshlrev_b32 v{a}, 7, v{LANE}', f'v_add_u32 v{a}, {WS_F2}, v{a}', f's_mov_b32 s{T0}, 0', 'L_idle1:']
    L += poll(a, 'L_polln', b)
    L += [f'v_add_u32 v{a}, 8192, v{a}', f's_add_u32 s{T0}, s{T0}, 1', f's_cmp_lt_u32 s{T0}, 4', 's_cbranch_scc1 L_idle1',
          f'v_mov_b32 v{b}, s{sTAG}', 's_mov_b64 exec, 1', f'buffer_store_dword v{b}, v{L16}, {srd(SWS)}, 0 offen sc1', 'L_end:', 's_endpgm']
    return L

def build():
    parts = []
    def sub(state, L):
        t = state.clone_state(); t.feed_all(L); parts.append(t); return t
    tags = lambda t: [x[0] for x in t.vm]
    t0 = Tracker(); t0.feed_all(setup() + [f's_cmp_ge_u32 s{sW}, 4', 's_cbranch_scc1 L_passA1']); parts.append(t0)
    ta0 = sub(t0, pass_A(0) + ['s_branch L_passAend'])
    ta1 = sub(t0, ['L_passA1:'] + pass_A(1))
    assert ta0.lg == ta1.lg and tags(ta0) == tags(ta1), (tags(ta0), tags(ta1))
    tr = ta1.clone_state(); tr.feed_all(['L_passAend:'] + stamp(2))
    if OPT['chunkst']: tr.feed_all([Sync()] + dump_stamps() + ['s_endpgm'])
    tr.feed_all([f's_cmp_ge_u32 s{sKIND}, 2', 's_cbranch_scc1 L_epiV', f's_cmp_eq_u32 s{sKIND}, 0', 's_cbranch_scc1 L_epiY'])
    parts.append(tr)
    EK, PK = OPT['epik'], OPT['pollk']
    def variant(kind):
        FK = OPT['f1y'] if kind == 'Y' else OPT['f1x']
        nf = 2 * min(EK - 1, 11)
        ex = {2*FK: [WaitTag('st')] + stamp(8) + set_flag(False)}
        for i, g in enumerate(dma_B(5) + dma_B(6)): ex.setdefault(2*EK - 9 + 2*i, []).extend(g)
        if kind != 'Y':
            ex.setdefault(2*EK - 2, []).append(store4(ACCA[1], sHA, 0)); ex.setdefault(2*EK - 1, []).append(store4(ACCA[2], sHA, 1024))
        return pass_B(0, EK, epi_A(kind), nf, ex)
    tx = sub(tr, variant('T') + ['s_branch L_epi2'])
    tv = sub(tr, ['L_epiV:'] + variant('V') + ['s_branch L_epi2'])
    ty = sub(tr, ['L_epiY:'] + variant('Y'))
    lgs = sorted([tx.lg, ty.lg, tv.lg], key=len)
    assert all(lgs[2][len(lgs[2]) - len(x):] == x for x in lgs)
    def tail(t):
        g = tags(t); return len(g) - 1 - max(i for i, x in enumerate(g) if x == 'B6') if 'B6' in g else None
    k = ty.clone_state(); k.lg = list(lgs[2])
    tl = [x for x in (tail(tx), tail(tv), tail(ty)) if x is not None]
    k.vm = ([('B6', set())] + [('st', set())] * min(tl)) if tl else []
    SK = PK - 4
    assert EK <= SK
    k.feed_all(['L_epi2:'] + stamp(7) + pass_B(EK, SK))
    k.feed_all([f's_cmp_ge_u32 s{sW}, 4', 's_cbranch_scc1 L_helper'])
    parts.append(k)
    ex = {2*PK - 3: flag_look(), 2*PK: flag_check() + stamp(9)}
    for q, part in enumerate(split(first_loads(), 2 * (28 - PK) - 1)): ex[2*PK + 1 + q] = part
    A = pass_B(SK, 28, attn_pre(), 5, ex) + epi_B() + stamp(6) + ['s_setprio 2'] + stamp(3)
    sub(k, A + attn_main() + attn_finish())
    ts = Tracker(); ts.feed_all(attn_slow()); parts.append(ts)
    hl, retry = helper()
    sub(k, ['L_helper:'] + pass_B(SK, 28, helper_pre(), 12) + epi_B() + hl)
    tq = Tracker()
    for x in retry:
        tq.vm = []; tq.feed(x)
    parts.append(tq)
    ti = Tracker(); ti.feed_all(idle()); parts.append(ti)
    body = '\n'.join(p.text() for p in parts)
    for p in parts:
        for n, t in p.log: print(f'nop {n}: {t}', file=sys.stderr)
    print('total nop states', sum(p.nops for p in parts), file=sys.stderr)
    hdr = f'''; fused layernorm + (MHA -> Wo) + (ReGLU FFN) + residual, one persistent launch (generated by gen/gen2.py)
; @launch grid=(256,1,1) block=(512,1,1) lds=163840
.amdgcn_target "amdgcn-amd-amdhsa--gfx950"
.text
.globl {NAME}_kernel
.p2align 8
.type {NAME}_kernel,@function
{NAME}_kernel:
'''
    ftr = f'''
.section .rodata,"a"
.p2align 6
.amdhsa_kernel {NAME}_kernel
  .amdhsa_next_free_vgpr 256
  .amdhsa_next_free_sgpr 102
  .amdhsa_accum_offset 256
  .amdhsa_group_segment_fixed_size 0
  .amdhsa_kernarg_size 80
  .amdhsa_user_sgpr_count 2
  .amdhsa_user_sgpr_kernarg_segment_ptr 1
  .amdhsa_system_sgpr_workgroup_id_x 1
.end_amdhsa_kernel
'''
    return hdr + body + ftr

if __name__ == '__main__':
    open(sys.argv[1], 'w').write(build())
```

```python
import re

REG_RE = re.compile(r'(?<![\w.])([vsa])(?:(\d+)|\[(\d+):(\d+)\])(?![\w])')

def regs_in(op):
    out = []
    for m in REG_RE.finditer(op):
        k = m.group(1)
        if m.group(2) is not None:
            out.append((k, int(m.group(2))))
        else:
            out += [(k, i) for i in range(int(m.group(3)), int(m.group(4)) + 1)]
    for sp in ('vcc', 'exec', 'm0'):
        if re.search(r'(?<![\w])' + sp + r'(?:_lo|_hi)?(?![\w])', op):
            out.append((sp, 0))
    return out

TRANS = ('v_exp_f32', 'v_log_f32', 'v_rcp_f32', 'v_rsq_f32', 'v_sqrt_f32', 'v_sin_f32', 'v_cos_f32')

class Ins:
    def __init__(self, text, tag=None):
        self.text = text.strip()
        self.tag = tag
        t = self.text.split(';')[0].strip()
        self.label = t.endswith(':')
        self.directive = t.startswith('.')
        self.rd = set(); self.wr = set(); self.kind = 'other'
        self.srcc = set(); self.srcab = set(); self.passes = 0
        self.op = ''
        if self.label or self.directive or not t:
            self.kind = 'meta'
            return
        parts = t.split(None, 1)
        op = parts[0]; self.op = op
        rest = parts[1] if len(parts) > 1 else ''
        ops = [o.strip() for o in rest.split(',')] if rest else []
        R = [regs_in(o) for o in ops]
        flat = lambda L: set(x for l in L for x in l)
        base = re.sub(r'_(e32|e64|sdwa|dpp)$', '', op)
        if op.startswith('v_mfma'):
            self.kind = 'mfma'
            self.wr = set(R[0]); self.srcab = flat(R[1:3]); self.srcc = set(R[3]); self.rd = self.srcab | self.srcc
            self.passes = 8 if '32x32' in op else 4
        elif op.startswith('v_'):
            self.kind = 'trans' if base in TRANS else 'valu'
            if op.startswith('v_permlane') and 'swap' in op:
                self.wr = flat(R[:2]); self.rd = flat(R[:2])
            elif op.startswith('v_cmp'):
                self.wr = set(R[0]); self.rd = flat(R[1:])
            elif base in ('v_add_co_u32', 'v_addc_co_u32', 'v_sub_co_u32'):
                self.wr = flat(R[:2]); self.rd = flat(R[2:])
            else:
                self.wr = set(R[0]); self.rd = flat(R[1:])
                if base in ('v_fmac_f32', 'v_dot2c_f32_bf16', 'v_writelane_b32') or 'dpp' in op or 'row_' in t or 'quad_perm' in t or 'UNUSED_PRESERVE' in t:
                    self.rd |= set(R[0])
            self.dpp = ('row_' in t or 'quad_perm' in t or 'dpp' in op)
        elif op.startswith('ds_'):
            self.kind = 'ds'
            if op.startswith('ds_read') or 'permute' in op or 'swizzle' in op or '_rtn' in op:
                self.wr = set(R[0]); self.rd = flat(R[1:])
            else:
                self.rd = flat(R)
        elif op.startswith('buffer_') or op.startswith('global_'):
            self.kind = 'vmem'
            self.isdma = bool(re.search(r'\blds\b', t))
            if 'load' in op and not self.isdma:
                self.wr = set(R[0]); self.rd = flat(R[1:])
            else:
                self.rd = flat(R)
                if self.isdma: self.rd.add(('m0', 0))
            self.wide_store = ('store' in op and ('x3' in op or 'x4' in op))
            self.sdata = set(R[0]) if ('store' in op and op.startswith('buffer_')) else set()
        elif op.startswith('s_'):
            self.kind = 'salu'
            if op.startswith('s_load') or op in ('s_memtime', 's_memrealtime'):
                self.kind = 'smem'
                self.wr = set(R[0]); self.rd = flat(R[1:])
            elif op in ('s_waitcnt', 's_barrier', 's_nop', 's_endpgm', 's_setprio', 's_sleep') or op.startswith('s_branch') or op.startswith('s_cbranch'):
                self.kind = 'ctl'
                if 'vcc' in op: self.rd.add(('vcc', 0))
            elif op.startswith('s_cmp') or op.startswith('s_bitcmp'):
                self.rd = flat(R)
            else:
                self.wr = set(R[0]); self.rd = flat(R[1:])
                if 'saveexec' in op: self.wr.add(('exec', 0))
        else:
            raise ValueError('unknown op ' + t)

    def states(self):
        if self.kind == 'meta' or getattr(self, 'skippable', False): return 0
        if self.op == 's_nop':
            return int(self.text.split()[1]) + 1
        return 1

class WaitTag:
    def __init__(self, *tags): self.tags = set(tags)
class DropTag:
    def __init__(self, *tags): self.tags = set(tags)
class Cond:
    def __init__(self, on): self.on = on
class Keep:
    def __init__(self, on): self.on = on
class Mark:
    def __init__(self, tag): self.tag = tag
class WaitLgkm0:
    pass
class Sync:
    def __init__(self, vm=True, lgkm=True): self.vm = vm; self.lgkm = lgkm

class Tracker:
    def __init__(self):
        self.vm = []
        self.lg = []
        self.hist = []
        self.out = []
        self.nops = 0
        self.log = []
        self.marks = {}; self.issued = 0
    def clone_state(self):
        t = Tracker(); t.vm = list(self.vm); t.lg = list(self.lg); t.hist = list(self.hist[-60:]); t.marks = dict(self.marks); t.issued = self.issued; return t
    def _emit(self, ins):
        self.out.append(ins);
        if ins.kind != 'meta': self.hist.append(ins)
    def _wait(self, vm=None, lg=None):
        parts = []
        if vm is not None:
            vm = min(vm, 63)
            if vm < len(self.vm):
                parts.append(f'vmcnt({vm})'); self.vm = self.vm[len(self.vm) - vm:] if vm else []
        if lg is not None:
            lg = min(lg, 15)
            if lg < len(self.lg):
                parts.append(f'lgkmcnt({lg})'); self.lg = self.lg[len(self.lg) - lg:] if lg else []
        if parts:
            self._emit(Ins('s_waitcnt ' + ' '.join(parts)))
    def need_states(self, c):
        need = 0; dist = 0
        for p in reversed(self.hist):
            if dist >= 20: break
            r = self._pair(p, c)
            if r > dist: need = max(need, r - dist)
            dist += p.states()
        return need
    def _pair(self, p, c):
        V = lambda s: set(x for x in s if x[0] in 'va')
        S = lambda s: set(x for x in s if x[0] == 's' or x[0] == 'vcc')
        r = 0
        isvalu = lambda i: i.kind in ('valu', 'trans')
        if p.kind == 'mfma':
            big = {8: 12, 4: 8}[p.passes]
            if c.kind == 'mfma':
                if p.wr & c.srcab: r = max(r, big)
                if p.wr & c.srcc:
                    if not (p.wr == c.srcc and p.passes == c.passes): r = max(r, big - 2)
            elif isvalu(c) or c.kind in ('ds', 'vmem'):
                if p.wr & (c.rd | c.wr): r = max(r, big)
                if isvalu(c) and (p.srcc & c.wr): r = max(r, {8: 7, 4: 3}[p.passes])
        elif isvalu(p):
            pv = V(p.wr); ps = S(p.wr)
            if c.kind == 'mfma' and (pv & c.rd): r = max(r, 2)
            if p.op.startswith('v_dot') and isvalu(c) and c.op != p.op and (pv & (c.rd | c.wr)): r = max(r, 3)
            if isvalu(c):
                if p.kind == 'trans' and c.kind != 'trans' and (pv & c.rd): r = max(r, 1)
                if c.op.startswith('v_permlane') and (pv & c.rd): r = max(r, 2)
                if getattr(c, 'dpp', False) and (pv & c.rd): r = max(r, 2)
                if c.op.startswith('v_readfirstlane') or c.op.startswith('v_readlane'):
                    if pv & c.rd: r = max(r, 1)
                    if ps & c.rd: r = max(r, 4)
                if ps & c.rd: r = max(r, 2)
                if ('sdwa' in p.op or 'op_sel' in p.text) and (pv & (c.rd | c.wr)): r = max(r, 1)
            if c.kind == 'vmem' and (ps & c.rd): r = max(r, 5)
            if c.kind in ('salu', 'ctl') and (ps & c.rd): r = max(r, 3)
        elif p.kind == 'salu':
            if ('m0', 0) in p.wr and c.kind == 'vmem' and c.isdma: r = max(r, 1)
        elif p.kind == 'vmem':
            if p.wide_store and (p.sdata & c.wr): r = max(r, 2)
        return r
    def feed(self, x):
        if isinstance(x, str): x = Ins(x)
        if isinstance(x, Mark):
            self.marks[x.tag] = self.issued; return
        if isinstance(x, WaitTag):
            for t in x.tags:
                if t in self.marks:
                    n = min(self.issued - self.marks[t], 63)
                    self._emit(Ins(f's_waitcnt vmcnt({n})'))
                    if n < len(self.vm): self.vm = self.vm[len(self.vm) - n:] if n else []
                    return
            idx = [i for i, (t, _) in enumerate(self.vm) if t in x.tags]
            if idx: self._wait(vm=len(self.vm) - 1 - max(idx))
            return
        if isinstance(x, Cond):
            if x.on: self.cond_start = len(self.hist)
            else:
                for i in self.hist[self.cond_start:]: i.skippable = True
            return
        if isinstance(x, Keep):
            if x.on: self.kept = (list(self.vm), list(self.lg), self.issued)
            else: self.vm, self.lg, self.issued = self.kept
            return
        if isinstance(x, DropTag):
            n0 = len(self.vm); self.vm = [e for e in self.vm if e[0] not in x.tags]; self.issued -= n0 - len(self.vm); return
        if isinstance(x, WaitLgkm0):
            self._wait(lg=0); return
        if isinstance(x, Sync):
            self._wait(vm=0 if x.vm else None, lg=0 if x.lgkm else None); return
        ins = x
        if ins.kind == 'meta':
            self._emit(ins); return
        if ins.op == 's_waitcnt':
            m = re.search(r'vmcnt\((\d+)\)', ins.text)
            if m:
                n = int(m.group(1)); self.vm = self.vm[len(self.vm) - n:] if n and n < len(self.vm) else ([] if n == 0 else self.vm)
            m = re.search(r'lgkmcnt\((\d+)\)', ins.text)
            if m:
                n = int(m.group(1)); self.lg = self.lg[len(self.lg) - n:] if n and n < len(self.lg) else ([] if n == 0 else self.lg)
            self._emit(ins); return
        if ins.op.startswith('s_cselect') or ins.op.startswith('s_cbranch_scc'):
            for p in reversed(self.hist):
                if p.op.startswith('s_cmp') or p.op.startswith('s_bitcmp'): break
                if p.kind == 'salu' and not (p.op.startswith('s_mov') or p.op.startswith('s_cselect') or p.op.startswith('s_mul') or p.op.startswith('s_getpc')):
                    raise ValueError(f'SCC clobbered by {p.text} before {ins.text}')
        touch = ins.rd | ins.wr
        wv = None; wl = None
        idx = [i for i, (_, d) in enumerate(self.vm) if d & touch]
        if idx: wv = len(self.vm) - 1 - max(idx)
        idx = [i for i, d in enumerate(self.lg) if d[1] & touch]
        if idx:
            wl = len(self.lg) - 1 - max(idx)
            if any(d[0] == 'smem' for d in self.lg): wl = 0
        if wv is not None or wl is not None: self._wait(vm=wv, lg=wl)
        n = self.need_states(ins)
        if n > 0:
            self.nops += n
            self.log.append((n, ins.text))
            while n > 0:
                k = min(n, 16)
                self._emit(Ins(f's_nop {k-1}')); n -= k
        self._emit(ins)
        if ins.kind == 'vmem': self.vm.append((ins.tag, set(ins.wr))); self.issued += 1
        elif ins.kind == 'ds': self.lg.append(('ds', set(ins.wr)))
        elif ins.kind == 'smem': self.lg.append(('smem', set(ins.wr)))
    def feed_all(self, L):
        for x in L: self.feed(x)
    def text(self):
        o = []
        for i in self.out:
            o.append(i.text if (i.label or i.directive) else '    ' + i.text)
        return '\n'.join(o)

def vr(a, n=1):
    return f'v{a}' if n == 1 else f'v[{a}:{a+n-1}]'
def sr(a, n=1):
    return f's{a}' if n == 1 else f's[{a}:{a+n-1}]'

def interleave(main, filler, counts=None):
    slots = [i for i, x in enumerate(main) if (isinstance(x, str) and x.startswith('v_mfma')) or (isinstance(x, Ins) and x.kind == 'mfma')]
    n = len(slots)
    out = []; fi = 0; k = 0
    for i, x in enumerate(main):
        out.append(x)
        if k < n and i == slots[k]:
            k += 1
            upto = (len(filler) * k + n - 1) // n if counts is None else min(len(filler), sum(counts[:k]))
            out += filler[fi:upto]; fi = max(fi, upto)
    out += filler[fi:]
    return out
```

```python
import sys, math, struct
from asmfw import *

NAME = 'parallel_sum__softmax_full_mha__glu_gated_reglu__prompt'
OPT = dict(stamps=0, rt=0, chunkst=0, fpoint=10, dspread=10, dshift=1, f1k=13, psleep=0, kvspread=1, nohelp=0, shift=4, lookk=20, pollk=24, okick=3, hwin=4, hwin2=4, nearly=0, f3h=24, kpre=3, nepi=8, bdepth=2, npre=12, b56=1, atst=0, pbst=0, nogu=0, f2t=8, f2b=2, hlook=11,
           noc=0, nostat=0, nodma=0, touch=1, hprio=1, cvalu=0, vfirst=0, cpos=0, sdot=0, startst=0, a1pre=5, nofin=0, nob34=0, nolate=0, vprio=0)
for a in sys.argv[2:]:
    k, v = a.split('=')
    assert k in OPT, k
    OPT[k] = int(v)
def f2u(x): return struct.unpack('<I', struct.pack('<f', x))[0]

WS_NONCE = 0
WS_F1 = 4096
WS_F3 = WS_F1 + 32768
WS_STAMP = WS_F3 + 32768
WS_F2 = 1 << 18
WS_QKV = 1 << 20
WS_O = WS_QKV + 48 * 131072
WS_H = WS_O + 64 * 32768
WS_END = WS_H + 64 * 112 * 1024
TAGK = 0x9E3779B9

LX = 0
LI = [49152, 73728, 98304]
LF0, LF1 = 122880, 139264
LC = 155648
LST = LC + 6144
BSLOT = [LF0, LF1, LX + 16384, LX + 32768, LI[0] + 8192, LI[1] + 8192, LI[2] + 8192]
LVT = LX
LSCR = [x + 8192 for x in LI]
RS = [LI[0], LI[1], LI[2], LF0, LF0 + 8192, LF1, LF1 + 8192] + [LX + 8192*i for i in range(6)] + [LC]
RWIN = [0, LI[1], LI[2] + 8192]
def rwin(a): return max(i for i, w in enumerate(RWIN) if w <= a)

SX, SI0, SI1, SI2, SG, SU, SWS, SD, SWO, SOUT = 20, 24, 28, 32, 36, 40, 44, 48, 52, 56
sW, sRB, sCB, sTAG, sXCD, sIDX = 60, 61, 62, 63, 64, 65
sOX, sO0, sO1, sO2, sSTEP, sOB = 66, 67, 68, 69, 70, 71
sW2K, sW1K, sMASK, sP0, sM, sCG = 72, 73, 74, 75, 76, 77
sKIND, sRG, sSCALE, sGU = 78, 79, 80, 81
T0, T1, T2, T3, T4, T5 = 82, 83, 84, 85, 86, 87
sHI = 88
sQO = [4, 5, 6]; sHA, sHB, sFL, sFL2, sFL3 = 7, 8, 9, 10, 11
sST = 90
srd = lambda b: sr(b, 4)

ACCA = [0, 16, 32]; ACCB = [48, 64]
WF = [80, 92]
UT = [88, 89, 90, 91]; CR = 100
ABW = [[104 + 4*t + s for s in range(4)] for t in range(2)]
SEL = 112
CACC = [116, 120, 124]
RS2, CR2 = 240, 124
XF = 128
VG, VU = 242, 243
CAD, L16, LANE, TMPV, RSTD = 241, 244, 245, 246, 247
CB_ = 248; CA_ = 252
AX = [48, 49, 50, 51]; VX = [52, 53]; VI = [54, 55, 56]
AW = [[60 + 4*t + s for s in range(4)] for t in range(3)]
S1, S2 = 57, 58; ST = [72, 73, 74, 75]

MF = 'v_mfma_f32_32x32x16_bf16'
def mfma(d, a, b, c=None):
    cs = '0' if c is None else vr(c, 16)
    return f'{MF} {vr(d,16)}, {vr(a,4)}, {vr(b,4)}, {cs}'
def mfma16(d, a, b, first):
    return f'v_mfma_f32_16x16x32_bf16 {vr(d,4)}, {vr(a,4)}, {vr(b,4)}, ' + ('0' if first else vr(d, 4))
CLK = 's_memrealtime' if OPT['rt'] else 's_memtime'
def stamp(i):
    if not OPT['stamps']: return []
    return [WaitLgkm0(), CLK + ' s[100:101]', 's_waitcnt lgkmcnt(0)', f's_mov_b32 s{sST+i}, s100']
def dump_stamps():
    if not OPT['stamps']: return []
    L = [f's_lshl_b32 s{T0}, s2, 3', f's_add_u32 s{T0}, s{T0}, s{sW}', f's_lshl_b32 s{T0}, s{T0}, 6', f's_add_u32 s{T0}, s{T0}, {WS_STAMP}',
         f's_memrealtime s[{T2}:{T3}]', 's_waitcnt lgkmcnt(0)']
    for i in range(10): L.append(f'v_mov_b32 v{208+i}, s{sST+i}')
    L += [f'v_mov_b32 v218, s{T2}', f'v_mov_b32 v219, s3', 'v_mov_b32 v220, 0',
          f'buffer_store_dwordx4 v[208:211], v220, {srd(SWS)}, s{T0} offen',
          f'buffer_store_dwordx4 v[212:215], v220, {srd(SWS)}, s{T0} offen offset:16',
          f'buffer_store_dwordx4 v[216:219], v220, {srd(SWS)}, s{T0} offen offset:32']
    return L
def split(L, n):
    return [L[(len(L) * i) // n:(len(L) * (i + 1)) // n] for i in range(n)]
def flat(L):
    o = []
    for x in L: o += x if isinstance(x, list) else [x]
    return o

def dma(vaddr, s, soff, m0base, m0imm, tag):
    return [f's_add_u32 m0, s{m0base}, {m0imm}', Ins(f'buffer_load_dwordx4 v{vaddr}, {srd(s)}, s{soff} offen lds', tag)]
def dma_A(c):
    sl = c % 3; tag = f'A{c}'
    return [dma(VX[0], SX, sOX, sW2K, LX + sl * 16384, tag),
            dma(VX[1], SX, sOX, sW2K, LX + sl * 16384 + 1024, tag) + [f's_add_u32 s{sOX}, s{sOX}, 128'],
            dma(VI[0], SI0, sO0, sW1K, LI[0] + sl * 8192, tag) + [f's_add_u32 s{sO0}, s{sO0}, {64*2688}'],
            dma(VI[1], SI1, sO1, sW1K, LI[1] + sl * 8192, tag) + [f's_add_u32 s{sO1}, s{sO1}, s{sSTEP}'],
            dma(VI[2], SI2, sO2, sW1K, LI[2] + sl * 8192, tag) + [f's_add_u32 s{sO2}, s{sO2}, s{sSTEP}']]
def dma_B(c):
    tag = f'B{c}'
    return [dma(VG, SG, sOB, sW1K, BSLOT[c], tag), dma(VU, SU, sOB, sW1K, BSLOT[c] + 8192, tag) + [f's_add_u32 s{sOB}, s{sOB}, {64*3584}']]
def store4(src, soff, imm=0, tag='st'):
    return Ins(f'buffer_store_dwordx4 {vr(src,4)}, v{L16}, {srd(SWS)}, s{soff} offen offset:{imm} sc1', tag)
def ld4(dst, soff, imm, tag=None):
    return Ins(f'buffer_load_dwordx4 {vr(dst,4)}, v{L16}, {srd(SWS)}, s{soff} offen offset:{imm} sc1', tag)

def zipl(A, B):
    o = []; n = max(len(A), len(B))
    for i in range(n):
        o += A[(len(A)*i)//n:(len(A)*(i+1))//n] + B[(len(B)*i)//n:(len(B)*(i+1))//n]
    return o
def setup():
    L = []; e = L.append
    e('s_cmp_ge_u32 s2, 256'); e('s_cbranch_scc1 L_end')
    if OPT['stamps']: e(f's_memrealtime s[{T2}:{T3}]'); e(CLK + ' s[100:101]')
    e(f's_load_dwordx4 s[{SX}:{SX+3}], s[0:1], 0'); e(f's_load_dwordx4 s[{SG}:{SG+3}], s[0:1], 32')
    e(f'v_lshrrev_b32 v1, 6, v0'); e(f'v_bfe_u32 v2, v0, 3, 3'); e(f'v_readfirstlane_b32 s{sW}, v1')
    S = []; a = S.append
    a(f's_bfe_u32 s{T0}, s2, {3 | 3 << 16:#x}'); a(f's_and_b32 s{T1}, s2, 1'); a(f's_lshl3_add_u32 s{sRB}, s{T1}, s{T0}')
    a(f's_bfe_u32 s{T0}, s2, {1 | 2 << 16:#x}'); a(f's_lshr_b32 s{sKIND}, s2, 6'); a(f's_lshl2_add_u32 s{sCB}, s{sKIND}, s{T0}')
    a(f's_mul_i32 s{sOX}, s{sRB}, {128*896}')
    a(f's_lshl_b32 s{sW2K}, s{sW}, 11'); a(f's_lshl_b32 s{sW1K}, s{sW}, 10')
    tbl = sum(v << (4 * i) for i, v in enumerate([0, 5, 8, 13, 3, 4, 11, 12]))
    a(f's_lshl_b32 s{T0}, s{sCB}, 2'); a(f's_lshr_b32 s{T0}, {tbl:#x}, s{T0}'); a(f's_and_b32 s{T0}, s{T0}, 15')
    a(f's_add_u32 s{T1}, s{sCB}, 8'); a(f's_cmp_ge_u32 s{sCB}, 8'); a(f's_cselect_b32 s{sP0}, s{T1}, s{T0}')
    a(f's_mul_i32 s{sO0}, s{sP0}, 112'); a(f's_lshl_b32 s{sOB}, s{sCB}, 7')
    a(f's_add_u32 s{T0}, s{sOB}, {12*128}'); a(f's_add_u32 s{T1}, s{sO0}, 112'); a(f's_add_u32 s{T4}, s{sO0}, 224')
    a(f's_mov_b32 s{SI0+2}, {448*2688}'); a(f's_mov_b32 s{SI0+3}, 0x20000'); a(f's_mov_b32 s{SU+2}, {448*3584}'); a(f's_mov_b32 s{SU+3}, 0x20000')
    a(f's_cmp_eq_u32 s{sKIND}, 0')
    a(f's_cselect_b32 s{sO1}, s{T1}, s{T0}'); a(f's_cselect_b32 s{sO2}, s{T4}, s{T0}')
    a(f's_cselect_b32 s{SI1+2}, s{SI0+2}, s{SU+2}'); a(f's_cselect_b64 vcc, -1, 0')
    a(f's_mov_b32 s{SI1+3}, 0x20000'); a(f's_mov_b32 s{SI2+2}, s{SI1+2}'); a(f's_mov_b32 s{SI2+3}, 0x20000')
    V = []; v = V.append
    v(f'v_and_b32 v3, 7, v0'); v(f'v_lshrrev_b32 v4, 1, v2'); v(f'v_xor_b32 v4, v4, v3')
    v(f'v_lshl_add_u32 v5, v1, 4, v2'); v(f'v_mul_u32_u24 v5, 896, v5')
    v(f'v_lshl_add_u32 v{VX[0]}, v4, 4, v5'); v(f'v_xor_b32 v4, 64, v{VX[0]}'); v(f'v_add_u32 v{VX[1]}, {8*896}, v4')
    v(f'v_lshrrev_b32 v4, 2, v0'); v(f'v_and_b32 v4, 4, v4'); v(f'v_xor_b32 v4, v4, v3')
    v(f'v_lshrrev_b32 v5, 3, v0')
    v(f'v_mul_u32_u24 v6, 2688, v5'); v(f'v_lshl_add_u32 v6, v4, 4, v6'); v(f'v_and_b32 v7, 4, v4'); v(f'v_lshlrev_b32 v7, 1, v7'); v(f'v_sub_u32 v{VI[0]}, v6, v7')
    v(f'v_mul_u32_u24 v6, 3584, v5'); v(f'v_lshl_add_u32 v{VG}, v4, 4, v6'); v(f'v_xor_b32 v{VU}, 32, v{VG}')
    v(f'v_and_b32 v{LANE}, 63, v0')
    L += zipl(S, V)
    e(f'v_cndmask_b32 v{VI[1]}, v{VG}, v{VI[0]}, vcc'); e(f'v_cndmask_b32 v{VI[2]}, v{VU}, v{VI[0]}, vcc')
    g0 = dma_A(0)
    e(f's_mov_b32 m0, s{sW2K}')
    e('s_waitcnt lgkmcnt(0)')
    if OPT['stamps']:
        e(f's_mov_b32 s3, s{T2}'); e(f's_mov_b32 s{sST}, s100')
    if OPT['startst']: L.extend(stamp(3))
    e(f's_mov_b64 s[{SI0}:{SI0+1}], s[{SX+2}:{SX+3}]'); e(f's_mov_b32 s{SX+2}, {2048*896}'); e(f's_mov_b32 s{SX+3}, 0x20000')
    L += g0[0][1:]
    e(f's_cselect_b64 s[{SI1}:{SI1+1}], s[{SI0}:{SI0+1}], s[{SG}:{SG+1}]'); e(f's_cselect_b64 s[{SI2}:{SI2+1}], s[{SI0}:{SI0+1}], s[{SG+2}:{SG+3}]')
    e(f's_mov_b32 s{T0}, {64*3584}'); e(f's_cselect_b32 s{sSTEP}, {64*2688}, s{T0}')
    L += [g0[1][0], f's_mov_b64 s[{SU}:{SU+1}], s[{SG+2}:{SG+3}]', g0[1][1], g0[2][0], g0[1][2], g0[2][1], g0[3][0], g0[2][2], g0[3][1], g0[4][0], g0[3][2]] + g0[4][1:]
    if OPT['startst']: L.extend(stamp(4))
    for b, off in ((SWS, 72), (SD, 48), (SWO, 16), (SOUT, 56)): e(f's_load_dwordx2 s[{b}:{b+1}], s[0:1], {off}')
    S = []; a = S.append
    a(f's_lshr_b32 s{sCG}, s{sW}, 2'); a(f's_and_b32 s{sRG}, s{sW}, 3')
    a(f's_mul_i32 s{T0}, s{sRG}, {4096+32}')
    a(f's_lshl_b32 s{T1}, s{sCG}, 6'); a(f's_lshl_b32 s{T4}, s{sRG}, 11'); a(f's_or_b32 s{T1}, s{T1}, s{T4}')
    L += S
    S = []; a = S.append
    a(f's_and_b32 s{sXCD}, s2, 7'); a(f's_lshr_b32 s{sIDX}, s2, 3')
    for b, n in ((SG, 448*3584), (SWS, WS_END), (SD, 1792*896), (SWO, 448*896), (SOUT, 2048*896)):
        a(f's_mov_b32 s{b+2}, {n}'); a(f's_mov_b32 s{b+3}, 0x20000')
    a(f's_mov_b32 s{sMASK}, 0xffff0000'); a(f's_mov_b32 s{sHI}, 0'); a(f's_mov_b32 s{sHI+1}, -1')
    a(f's_lshl2_add_u32 s{sM}, s{sRB}, s{sRG}')
    if OPT['stamps']:
        for i in range(1, 10):
            if not (OPT['startst'] and i in (3, 4)): a(f's_mov_b32 s{sST+i}, 0')
    V = []; v = V.append
    v(f'v_and_b32 v2, 31, v0'); v(f'v_bfe_u32 v3, v0, 5, 1')
    v(f'v_bfe_u32 v4, v0, 1, 3'); v(f'v_xor_b32 v4, v4, v3'); v(f'v_lshlrev_b32 v4, 4, v4')
    v(f'v_lshl_add_u32 v4, v2, 7, v4'); v(f'v_xor_b32 v{AX[0]}, s{T0}, v4')
    v(f'v_bfe_u32 v4, v0, 2, 2'); v(f'v_and_b32 v5, 11, v0'); v(f'v_lshlrev_b32 v5, 3, v5'); v(f'v_lshl_add_u32 v5, v4, 7, v5')
    v(f'v_bfe_u32 v6, v0, 4, 1'); v(f'v_lshl_add_u32 v5, v3, 10, v5'); v(f'v_lshl_add_u32 v5, v6, 5, v5'); v(f'v_xor_b32 v5, s{T1}, v5')
    v(f'v_add_u32 v{AW[0][0]}, {LI[0]}, v5')
    v(f'v_mul_u32_u24 v7, {LI[2]-LI[1]}, v6'); v(f'v_add_u32 v9, {LI[1]}, v5'); v(f'v_add_u32 v7, v7, v9'); v(f'v_xor_b32 v8, 32, v7')
    v(f'v_add_u32 v10, {LI[2]}, v5')
    v(f'v_cndmask_b32 v{AW[1][0]}, v7, v9, vcc'); v(f'v_cndmask_b32 v{AW[2][0]}, v8, v10, vcc')
    v(f'v_lshl_add_u32 v{ABW[0][0]}, v6, 13, v5')
    v(f'v_bfe_u32 v5, v0, 4, 2'); v(f'v_cmp_eq_u32 vcc, v4, v5'); v(f'v_mov_b32 v7, 0x3f803f80')
    for s in (1, 2, 3):
        v(f'v_xor_b32 v{AX[s]}, {32*s}, v{AX[0]}')
        for A in AW: v(f'v_xor_b32 v{A[s]}, {2048*s}, v{A[0]}')
    for r in range(4): v(f'v_cndmask_b32 v{SEL+r}, 0, v7, vcc')
    for r in (S1, S2): v(f'v_mov_b32 v{r}, 0')
    L += zipl(S, V)
    if OPT['startst']: L.extend(stamp(5))
    e('s_waitcnt lgkmcnt(0)')
    e(f's_load_dword s{sTAG}, s[{SWS}:{SWS+1}], {WS_NONCE}')
    if OPT['touch']:
        e('s_getpc_b64 s[10:11]'); e('L_pc:')
        e(f'v_and_b32 v2, 1, v0'); e(f'v_lshl_add_u32 v2, v1, 1, v2'); e(f's_lshl_b32 s{T0}, s{sIDX}, 4'); e(f'v_add_u32 v2, s{T0}, v2')
        e(f'v_lshlrev_b32 v2, 7, v2'); e(f'v_min_u32 v2, L_end-L_pc, v2'); e(f'global_load_dword v{TMPV}, v2, s[10:11]')
    for g in dma_A(1)[:OPT['a1pre']]: L.extend(g)
    if OPT['startst']: L.extend(stamp(7) + [WaitTag('A0')] + stamp(8))
    e('s_waitcnt lgkmcnt(0)')
    return L

def late_setup():
    L = []; e = L.append
    e(f's_add_u32 s{sTAG}, s{sTAG}, {TAGK:#x}')
    e(f'v_lshlrev_b32 v{L16}, 4, v{LANE}')
    e(f'v_add_u32 v{ABW[0][0]}, {BWIN_HI}, v{ABW[0][0]}'); e(f'v_xor_b32 v{ABW[1][0]}, 32, v{ABW[0][0]}')
    for A in ABW:
        for s in (1, 2, 3): e(f'v_xor_b32 v{A[s]}, {2048*s}, v{A[0]}')
    for r in (CB_ + 2, CB_ + 3, CA_ + 2, CA_ + 3): e(f'v_mov_b32 v{r}, 0')
    e(f's_mul_i32 s{T0}, s{sCG}, 3072'); e(f's_add_u32 s{T0}, s{T0}, {LC}'); e(f'v_add_u32 v{CAD}, s{T0}, v{L16}')
    for r in range(4): e(f'v_mov_b32 v{76+r}, -1')
    e(f's_lshl_b32 s{T0}, s{sM}, 4'); e(f's_add_u32 s{T0}, s{T0}, s{sCB}'); e(f's_lshl_b32 s{T0}, s{T0}, 1'); e(f's_add_u32 s{T0}, s{T0}, s{sCG}')
    e(f's_lshl_b32 s{T0}, s{T0}, 10'); e(f's_add_u32 s{T0}, s{T0}, {WS_O}')
    L.append(store4(76, T0, 0, 'po'))
    qs = (28 ** -0.5) * math.log2(math.e)
    e([f's_cmp_lt_u32 s{sP0}, 8', f's_cselect_b32 s{sSCALE}, {f2u(qs):#x}, 1.0'])
    e(f's_lshl_b32 s{T0}, s{sP0}, 1'); e(f's_add_u32 s{T0}, s{T0}, s{sCG}')
    e(f's_lshl_b32 s{T1}, s{T0}, 17'); e(f's_lshl_b32 s{T2}, s{sM}, 11'); e(f's_add_u32 s{T1}, s{T1}, s{T2}')
    for I in range(3): e(f's_add_u32 s{sQO[I]}, s{T1}, {WS_QKV + I*2*131072}')
    e(f's_mul_i32 s{T1}, s{sM}, 28'); e(f's_add_u32 s{T1}, s{T1}, s{sCB}'); e(f's_lshl_b32 s{T1}, s{T1}, 1'); e(f's_add_u32 s{T1}, s{T1}, s{sCG}')
    e(f's_lshl_b32 s{T1}, s{T1}, 11'); e(f's_add_u32 s{sHB}, s{T1}, {WS_H}'); e(f's_add_u32 s{sHA}, s{sHB}, {12*4096}')
    e(f's_lshl4_add_u32 s{T0}, s{sRB}, s{sCB}'); e(f's_lshl_b32 s{T1}, s{T0}, 7'); e(f's_add_u32 s{sFL}, s{T1}, {WS_F1}'); e(f's_add_u32 s{sFL3}, s{T1}, {WS_F3}')
    e(f's_lshl3_add_u32 s{T0}, s{T0}, s{sW}'); e(f's_lshl_b32 s{T0}, s{T0}, 7'); e(f's_add_u32 s{sFL2}, s{T0}, {WS_F2}')
    e(f'v_mov_b32 v{TMPV}, s{sTAG}')
    return L

def tr2(b, ar, off, step=512):
    return [f'ds_read_b64_tr_b16 v[{b}:{b+1}], v{ar} offset:{off}', f'ds_read_b64_tr_b16 v[{b+2}:{b+3}], v{ar} offset:{off+step}']
def xread(ks):
    return f'ds_read_b128 {vr(XF+4*ks,4)}, v{AX[ks & 3]} offset:{LX + ((ks >> 2) % 3)*16384}'
def wreads_A(ks):
    return [tr2(WF[ks & 1] + 4*t, AW[t][ks & 3], ((ks >> 2) % 3) * 8192) for t in range(3)]
BWIN_HI = LI[1] + 8192
def bwin(c): return BWIN_HI if BSLOT[c] >= BWIN_HI else 0
W3 = XF
def wbuf(ks):
    if OPT['bdepth'] == 1 or ks < 3: return WF[ks & 1]
    return [WF[1], W3, WF[0]][ks % 3]
def reads_B(ks):
    c, s = ks >> 2, ks & 3
    return [tr2(wbuf(ks) + 4*t, ABW[t][s], BSLOT[c] - bwin(c)) for t in range(2)]
def rsched_B(ks):
    if OPT['bdepth'] == 1 or ks < 2: r = [ks + 1]
    elif ks == 2: r = [3, 4]
    else: r = [ks + 2]
    return [k for k in r if k < 28]
def rebase_B(ks):
    c, s = ks >> 2, ks & 3
    if c == 6 or bwin(c + 1) == bwin(c): return []
    d = bwin(c + 1) - bwin(c)
    return [f"{'v_add_u32' if d > 0 else 'v_subrev_u32'} v{ABW[t][s]}, {abs(d)}, v{ABW[t][s]}" for t in range(2)]
def stat_ops(ks):
    L = []
    for i in range(4):
        a, b = ST[(2*i) % 4], ST[(2*i + 1) % 4]; x = XF + 4*ks + i
        L += [f'v_and_b32 v{a}, s{sMASK}, v{x}', f'v_lshlrev_b32 v{b}, 16, v{x}', f'v_add_f32 v{S1}, v{S1}, v{a}', f'v_fmac_f32 v{S2}, v{a}, v{a}',
              f'v_add_f32 v{S1}, v{S1}, v{b}', f'v_fmac_f32 v{S2}, v{b}, v{b}']
    return L
def cpub(n, tmp):
    L = [f's_lshl_b32 s{T0}, s{sRG}, 2', f'v_add_u32 v{tmp}, s{T0}, v{CAD}']
    return L, [f'ds_write_b32 v{tmp}, v{CACC[i]} offset:{i*1024}' for i in range(n)]

def pass_A(cg):
    L = [WaitTag('A0'), 's_barrier'] + stamp(1)
    L += [xread(0)] + flat(wreads_A(0))
    fill = {i: [] for i in range(84)}; rd = {i: [] for i in range(84)}; cm = {i: [] for i in range(84)}; dslot = {i: [] for i in range(84)}
    for ks in range(28):
        c, s = ks >> 2, ks & 3
        if ks < 27:
            w = wreads_A(ks + 1)
            xs = [ks + 1] if c < 6 or s == 3 else ([25, 26] if s == 0 else [27] if s == 1 else [])
            xr = [xread(k) for k in xs]
            rd[3*ks] = xr[:1] + w[0]; rd[3*ks + 1] = w[1]; rd[3*ks + 2] = w[2] + xr[1:]
        else:
            rd[3*ks] = cread(CR2, 1) + stats_rd(); rd[3*ks + 1] = flat(reads_B(0)); rd[3*ks + 2] = cread(CR, 0) + cread(CACC[0], 2)
        if s < 3 and not OPT['noc']: cm[3*ks + s] = [mfma16(CACC[s], SEL, WF[ks & 1] + 4*s, c == 0)]
    if not OPT['nostat']:
        for c in range(7):
            if c < 6:
                own = [(4*c + cg, 3*(4*c + cg), 6), (4*c + 2 + cg, 3*(4*c + 2 + cg), 6)]
            else:
                own = [(24, 72, 4), (26, 76, 4)] if cg == 0 else [(25, 75, 2), (27, 77, 3)]
            if OPT['sdot']:
                pos = 12*c + 8 + 3*cg if c < 6 else 78
                fill[pos] += stat_dot([k for k, _, _ in own]); continue
            for k, s0, n in own:
                for i, part in enumerate(split(stat_ops(k), n)): fill[min(s0 + i, 83)] += part
    for i, part in enumerate(split([] if OPT['nolate'] else late_setup(), 48)): fill[12 + i] += flat(part)
    pa, pw = cpub(3, ST[2])
    a = ST[0]
    fill[80] += [f'v_and_b32 v{a}, 31, v{LANE}', f'v_lshrrev_b32 v{ST[1]}, 5, v{LANE}', f'v_lshlrev_b32 v{a}, 4, v{a}', f'v_permlane32_swap_b32 v{S1}, v{S2}',
                 f'v_lshl_add_u32 v{a}, v{ST[1]}, 3, v{a}', f's_lshl_b32 s{T1}, s{sRG}, 9', f's_add_u32 s{T1}, s{T1}, {LST + 4*cg}',
                 f'v_add_f32 v{S1}, v{S1}, v{S2}', f'v_add_u32 v{a}, s{T1}, v{a}', f'v_and_b32 v{ST[3]}, -16, v{a}'] + pa
    fin = pw + [f'ds_write_b32 v{a}, v{S1}']
    def spread(groups, first, nslots):
        for i, g in enumerate(groups): dslot[first + cg * OPT['dshift'] + (i * nslots) // len(groups)] += g
    NS = OPT['dspread']
    spread(dma_A(1)[OPT['a1pre']:] + dma_A(2), 0, 9)
    for c in range(4): spread(dma_A(c + 3), 3 * (4*c + 3) + 1, NS)
    spread(dma_B(0) + dma_B(1) + dma_B(2), 3 * 19 + 1, 11)
    if not OPT['nob34']: spread(dma_B(3) + dma_B(4), 3 * 23 + 1, 6)
    for ks in range(28):
        c, s = ks >> 2, ks & 3
        for t in range(3):
            sl = 3*ks + t
            dd = [] if OPT['nodma'] else dslot[sl]
            L += dd[:1]
            L.append(mfma(ACCA[t], WF[ks & 1] + 4*t, XF + 4*ks, None if ks == 0 else ACCA[t]))
            if t == 0 and s == 3:
                if c == 6 and not OPT['nofin']: L += fin
                L += [WaitTag(f'A{c+1}') if c < 6 else WaitTag('B0', 'B1', 'B2'), WaitLgkm0(), 's_barrier']
                if OPT['chunkst'] and not OPT['startst']: L += stamp(3 + c)
                if OPT['startst'] and c == 0: L += stamp(9)
            if OPT['vprio'] and fill[sl]: fill[sl] = ['s_setprio 0'] + fill[sl] + ['s_setprio 1']
            if sl == 80: L += rd[sl] + dd[1:] + cm[sl] + fill[sl]
            elif OPT['vfirst'] and not (t == 0 and s == 3): L += (cm[sl] + fill[sl] + rd[sl] + dd[1:]) if OPT['cpos'] else (fill[sl] + rd[sl] + dd[1:] + cm[sl])
            else: L += rd[sl] + dd[1:] + fill[sl] + cm[sl]
    return L

def stats_rd():
    return [f'ds_read_b128 {vr(UT[0],4)}, v{ST[3]}']
def stats():
    a, b, c, d = UT
    return [f'v_add_f32 v{b}, v{a}, v{b}', f'v_add_f32 v{RS2}, v{c}, v{d}',
            f'v_mul_f32 v{b}, {f2u(-1.0/448):#x}, v{b}',
            f'v_mul_f32 v{RS2}, {f2u(1.0/448):#x}, v{RS2}',
            f'v_and_b32 v{c}, s{sMASK}, v{b}',
            f'v_fma_f32 v{RS2}, -v{b}, v{b}, v{RS2}',
            f'v_sub_f32 v{d}, v{b}, v{c}',
            f'v_max_f32 v{RS2}, 0, v{RS2}',
            f'v_cvt_pk_bf16_f32 v{CB_}, v{c}, v{c}', f'v_add_f32 v{RS2}, {f2u(1e-5):#x}, v{RS2}',
            f'v_cvt_pk_bf16_f32 v{CB_+1}, v{d}, v{CB_+2}',
            f'v_rsq_f32 v{RSTD}, v{RS2}']
def stats2():
    return [f'v_mul_f32 v{RS2}, v{RSTD}, v{RSTD}', f'v_mul_f32 v{RSTD}, s{sSCALE}, v{RSTD}']
def cread(dst, t): return [f'ds_read_b128 {vr(dst,4)}, v{CAD} offset:{t*1024}']
def correct(acc, r, pad=()):
    return [f'v_add_f32 v{r}, v{r}, v{r+1}', f'v_add_f32 v{r+2}, v{r+2}, v{r+3}', f'v_add_f32 v{r}, v{r}, v{r+2}',
            f'v_and_b32 v{r+1}, s{sMASK}, v{r}', f'v_lshrrev_b32 v{CA_+1}, 16, v{r}', f'v_sub_f32 v{r+2}, v{r}, v{r+1}',
            f'v_cvt_pk_bf16_f32 v{CA_}, v{r+1}, v{r+2}'] + list(pad) + [mfma(acc, CA_, CB_, acc)]
def head_half(acc, h, isv):
    L = [f'v_mul_f32 v{acc+8*h+i}, v{RSTD}, v{acc+8*h+i}' for i in range(8)]
    L += [f'v_cvt_pk_bf16_f32 v{acc+4*h+i}, v{acc+8*h+2*i}, v{acc+8*h+2*i+1}' for i in range(4)]
    if h == 1:
        if isv: L += [f'v_mov_b32 v{acc+8}, 0x3f80', f'v_cndmask_b32 v{acc+6}, v{acc+6}, v{acc+8}, s[{sHI}:{sHI+1}]']
        else: L += [f'v_cndmask_b32 v{acc+6}, v{acc+6}, 0, s[{sHI}:{sHI+1}]']
        L += [f'v_cndmask_b32 v{acc+7}, v{acc+7}, 0, s[{sHI}:{sHI+1}]']
    return L
def epi_T(acc, I):
    return head_half(acc, 0, False) + [store4(acc, sQO[I], 0)] + head_half(acc, 1, False) + [store4(acc + 4, sQO[I], 1024)]
def v_addr():
    a, b, c, d = UT
    return [f'v_and_b32 v{a}, 31, v{LANE}', f'v_lshrrev_b32 v{b}, 5, v{LANE}', f'v_bfe_u32 v{c}, v{LANE}, 1, 3', f'v_xor_b32 v{c}, v{b}, v{c}',
            f'v_lshlrev_b32 v{c}, 3, v{c}', f'v_lshl_add_u32 v{a}, v{a}, 6, v{c}', f'v_add_u32 v{a}, s{sW2K}, v{a}',
            f'v_bfe_u32 v{c}, v{LANE}, 2, 2', f'v_lshl_add_u32 v{c}, v{b}, 2, v{c}',
            f'v_bfe_u32 v{b}, v{LANE}, 4, 1', f'v_and_b32 v{d}, 3, v{LANE}', f'v_lshl_add_u32 v{b}, v{b}, 2, v{d}',
            f'v_lshrrev_b32 v{d}, 1, v{c}', f'v_xor_b32 v{b}, v{b}, v{d}', f'v_lshlrev_b32 v{b}, 3, v{b}', f'v_lshl_add_u32 v{c}, v{c}, 6, v{b}',
            f'v_add_u32 v{c}, s{sW2K}, v{c}', f'v_xor_b32 v{d}, 32, v{c}']
def epi_V(acc):
    a, b, c, d = UT
    L = head_half(acc, 0, True) + [f'ds_write_b64 v{a}, {vr(acc,2)} offset:{LVT}', f'v_xor_b32 v{b}, 16, v{a}', f'ds_write_b64 v{b}, {vr(acc+2,2)} offset:{LVT}']
    L += head_half(acc, 1, True) + [f'v_xor_b32 v{a}, 32, v{a}', f'v_xor_b32 v{b}, 32, v{b}',
                                    f'ds_write_b64 v{a}, {vr(acc+4,2)} offset:{LVT}', f'ds_write_b64 v{b}, {vr(acc+6,2)} offset:{LVT}']
    L += [f'ds_read_b64_tr_b16 {vr(acc+8+2*i,2)}, v{d if i & 1 else c} offset:{LVT + 512*i}' for i in range(4)]
    return L, [store4(acc + 8, sQO[0], 0), store4(acc + 12, sQO[0], 1024)]
def epi_gu(acc, dst=None):
    L = []; dst = acc if dst is None else dst
    for i in range(8):
        L += [f'v_max_f32 v{acc+i}, 0, v{acc+i}', f'v_mul_f32 v{acc+8+i}, v{RS2}, v{acc+8+i}', f'v_mul_f32 v{acc+i}, v{acc+i}, v{acc+8+i}']
    return L + [f'v_cvt_pk_bf16_f32 v{dst+i}, v{acc+2*i}, v{acc+2*i+1}' for i in range(4)]
def set_flag(so, mask='1'):
    return [f's_mov_b64 exec, {mask}', Ins(f'buffer_store_dword v{TMPV}, v{L16}, {srd(SWS)}, s{so} offen sc1', 'flag'), 's_mov_b64 exec, -1']
def wg_flag(so, lab):
    return [f's_cmp_eq_u32 s{sW}, 4', f's_cbranch_scc0 {lab}', Cond(True)] + set_flag(so) + [Cond(False), DropTag('flag'), f'{lab}:']
def epi_common():
    return stats() + correct(ACCA[0], CR, stats2()) + correct(ACCA[1], CR2) + correct(ACCA[2], CACC[0])
def gu_block(lab):
    return [f's_cmp_eq_u32 s{sKIND}, 0', f's_cbranch_scc1 {lab}', Cond(True)] + epi_gu(ACCA[1]) + epi_gu(ACCA[2]) + [Cond(False), f'{lab}:']
def gu_store(lab):
    return [f's_cmp_eq_u32 s{sKIND}, 0', f's_cbranch_scc1 {lab}', Cond(True), store4(ACCA[1], sHA, 0, 'ha'), store4(ACCA[2], sHA, 1024, 'ha'),
            Cond(False), DropTag('ha'), Mark('hm'), f'{lab}:']

def pass_B(k0, k1, filler=(), nfill=None, extra=None, fill0=0):
    extra = extra or {}
    L = []
    nfill = nfill or 2 * (k1 - k0)
    f = [[]] * fill0 + split(list(filler), nfill) + [[]] * (2 * (k1 - k0))
    pa, pw = cpub(2, UT[0])
    for ks in range(k0, k1):
        c, s = ks >> 2, ks & 3
        rs = rsched_B(ks)
        rr = split(flat(flat([reads_B(k) for k in rs])), 2)
        for t in range(2):
            sl = 2*ks + t
            ex = extra.get(sl, [])
            pre = ex[:1] if ex and isinstance(ex[0], str) and ' m0,' in ex[0] else []
            L += pre
            L.append(mfma(ACCB[t], wbuf(ks) + 4*t, XF + 4*ks, None if ks == 0 else ACCB[t]))
            if t == 0 and 12 in rs: L += [WaitTag('B3', 'B4'), 's_barrier']
            if t == 0 and 20 in rs: L += [WaitTag('B5', 'B6'), 's_barrier']
            if OPT['pbst'] and t == 0 and ks in (5, 11, 15, 19, 23): L += stamp({5: 1, 11: 8, 15: 3, 19: 4, 23: 5}[ks])
            if sl == 53: L += pw
            if sl == 54: L += [WaitLgkm0(), 's_barrier'] + cread(CR, 0) + cread(CR2, 1)
            L += rr[t] + ex[len(pre):] + flat(f[2 * (ks - k0) + t])
            if t == 1:
                for k in ([0] if ks == 0 else []) + rs: L += rebase_B(k)
            if sl == 51: L += pa
            if s == t and not OPT['noc']: L.append(mfma16(CACC[t], SEL, wbuf(ks) + 4*t, c == 0))
    return L
def epi_B(loads=(), stores=True):
    E = [WaitLgkm0(), 's_barrier'] + correct(ACCB[0], CR) + correct(ACCB[1], CR2)
    st = [store4(ACCB[0], sHB, 0), store4(ACCB[0] + 4, sHB, 1024)]
    G = epi_gu(ACCB[0]) + (st[:1] if stores else []) + epi_gu(ACCB[1], ACCB[0] + 4) + (st[1:] if stores else [])
    E += zipl(list(loads), G) if loads else G
    return E if stores else (E, st)

QF = 136; OA = 0; NB = 4
KF = [168, 184, 200, 216]; VF = [176, 192, 208, 224]
SB = [64, 80]; PB = [96, 104]; EB = 112; AR = 120
sHD, sQB, sKO, sVO, sOO = 66, 67, 68, 69, 70
sKT = 20
PA, PV_ = 4, 5
def poll(addr, label, tmp):
    return [f's_mov_b32 s{T5}, 0', f'{label}:'] + ([f's_sleep {OPT["psleep"]}'] if OPT['psleep'] else []) + [
            f'buffer_load_dword v{tmp}, v{addr}, {srd(SWS)}, 0 offen sc1', f's_add_u32 s{T5}, s{T5}, 1', 's_waitcnt vmcnt(0)',
            f'v_cmp_ne_u32 vcc, s{sTAG}, v{tmp}', f's_cmp_lt_u32 s{T5}, 100000', f's_cselect_b64 s[{T2}:{T3}], -1, 0',
            f's_and_b64 vcc, vcc, s[{T2}:{T3}]', f's_cbranch_vccnz {label}']
def look(addr, tmp): return [f'buffer_load_dword v{tmp}, v{addr}, {srd(SWS)}, 0 offen sc1']
def check_flags(addr, tmp, lab):
    return [f'v_cmp_ne_u32 vcc, s{sTAG}, v{tmp}', f's_cbranch_vccz {lab}ok', Cond(True), Keep(True)] + poll(addr, lab, tmp) + [Keep(False), Cond(False), f'{lab}ok:']
def attn_pre():
    L = []; e = L.append
    e(f's_lshr_b32 s{T0}, s{sIDX}, 4'); e(f's_lshl_b32 s{sHD}, s{sXCD}, 1'); e(f's_add_u32 s{sHD}, s{sHD}, s{T0}'); e(f's_and_b32 s{sQB}, s{sIDX}, 15')
    tbl = sum(v << (4 * i) for i, v in enumerate([0, 0, 0, 4, 5, 1, 1, 1]))
    e(f's_lshl_b32 s{T1}, s{sXCD}, 2'); e(f's_lshr_b32 s{T1}, {tbl:#x}, s{T1}'); e(f's_and_b32 s{T1}, s{T1}, 15')
    a, b, c = PA, 6, 7
    e(f'v_bfe_u32 v{a}, v{LANE}, 2, 2'); e(f's_lshl_b32 s{T2}, s{sW}, 2'); e(f'v_add_u32 v{a}, s{T2}, v{a}'); e(f'v_mov_b32 v{b}, s{sQB}')
    e(f'v_cndmask_b32 v{a}, v{a}, v{b}, s[{sHI}:{sHI+1}]'); e(f'v_lshlrev_b32 v{a}, 11, v{a}')
    e(f's_add_u32 s{T2}, s{T1}, 2'); e(f's_add_u32 s{T3}, s{sXCD}, 8'); e(f's_lshl_b32 s{T3}, s{T3}, 8'); e(f's_or_b32 s{T2}, s{T2}, s{T3}')
    e(f's_lshl_b32 s{T3}, s{T1}, 16'); e(f's_or_b32 s{T2}, s{T2}, s{T3}'); e(f's_lshl_b32 s{T3}, s{sHD}, 24'); e(f's_or_b32 s{T2}, s{T2}, s{T3}')
    e(f'v_lshrrev_b32 v{b}, 4, v{LANE}'); e(f'v_lshlrev_b32 v{b}, 3, v{b}'); e(f'v_bfe_u32 v{b}, s{T2}, v{b}, 8'); e(f'v_lshl_add_u32 v{a}, v{b}, 7, v{a}')
    e(f'v_add_u32 v{a}, {WS_F1}, v{a}')
    e(f's_lshl_b32 s{T0}, s{sHD}, 17'); e(f's_add_u32 s{T0}, s{T0}, {WS_QKV}')
    e(f's_lshl_b32 s{T1}, s{sW}, 15'); e(f's_add_u32 s{T1}, s{T0}, s{T1}')
    for p in range(8):
        e(f's_add_u32 s{sKT+p}, s{T1}, {16*131072 + 4096*p}'); e(f's_add_u32 s{sKT+8+p}, s{T1}, {32*131072 + 4096*p}')
    e(f's_lshl_b32 s{T1}, s{sQB}, 13'); e(f's_add_u32 s{T0}, s{T0}, s{T1}')
    for j in range(4):
        e(f's_add_u32 s{T1}, s{sW}, {1+j}'); e(f's_and_b32 s{T1}, s{T1}, 3'); e(f's_lshl_b32 s{12+j}, s{T1}, 12')
        e(f's_lshl_b32 s{T1}, s{T1}, 11'); e(f's_add_u32 s{36+j}, s{T1}, s{T0}'); e(f's_add_u32 s{12+j}, s{12+j}, {LSCR[j % 3]}')
    e(f's_lshl_b32 s{T0}, s{sQB}, 2'); e(f's_add_u32 s{T0}, s{T0}, s{sW}'); e(f's_lshl_b32 s{T0}, s{T0}, 4'); e(f's_add_u32 s{T0}, s{T0}, s{sHD}')
    e(f's_lshl_b32 s{T0}, s{T0}, 11'); e(f's_add_u32 s{sOO}, s{T0}, {WS_O}')
    return L
def kv_load(kt):
    imm = 2048 * (kt & 1); b = kt % NB
    return [ld4(KF[b], sKT + (kt >> 1), imm), ld4(KF[b] + 4, sKT + (kt >> 1), imm + 1024),
            ld4(VF[b], sKT + 8 + (kt >> 1), imm), ld4(VF[b] + 4, sKT + 8 + (kt >> 1), imm + 1024)]
def first_loads():
    k0 = kv_load(0)
    L = k0[:2]
    for j in range(4): L += [ld4(QF + 8*j, 36 + j, 0), ld4(QF + 8*j + 4, 36 + j, 1024)]
    L = L[:6] + k0[2:] + L[6:]
    for kt in range(1, NB - 1): L += kv_load(kt)
    return L
def attn_main(rest):
    L = []; rest = list(rest)
    NT = 64
    K = lambda i: KF[(i >> 2) % NB]; V = lambda i: VF[(i >> 2) % NB]
    Q = lambda i: QF + 8 * (i & 3); O = lambda i: OA + 16 * (i & 3)
    S = lambda i: SB[i & 1]; P = lambda i: PB[i & 1]
    qka = lambda i: mfma(S(i), K(i), Q(i), None)
    qkb = lambda i: mfma(S(i), K(i) + 4, Q(i) + 4, S(i))
    pva = lambda i: mfma(O(i), V(i), P(i), None if i < 4 else O(i))
    pvb = lambda i: mfma(O(i), V(i) + 4, P(i) + 4, O(i))
    ex = lambda i, g: [f'v_exp_f32 v{EB + (4*g + j) % 8}, v{S(i) + 4*g + j}' for j in range(4)]
    cv = lambda i, g: [f'v_cvt_pk_bf16_f32 v{P(i) + 2*g + j}, v{EB + (4*g + 2*j) % 8}, v{EB + (4*g + 2*j + 1) % 8}' for j in range(2)]
    L += [qka(0), qkb(0)] + [f'v_add_u32 v{AR+j}, s{12+j}, v{L16}' for j in range(4)] + [f's_mov_b64 s[{T4}:{T5}], -1', f's_mov_b32 s{T0}, {f2u(2.0**60):#x}']
    for i in range(NT + 1):
        kt, j = i >> 2, i & 3
        extra = [[], [], [], []]
        if i < NT and kt + NB - 1 < 16:
            if kt == 0 or not OPT['kvspread']:
                if j == (3 if kt == 0 else 1):
                    for q, x in enumerate(kv_load(kt + NB - 1)): x.tag = f'KV{kt+NB-1}'; extra[q] = [x]
            else:
                x = kv_load(kt + NB - 1)[j]; x.tag = f'KV{kt+NB-1}'; extra[3] = [x]
        for q in range(4):
            if rest and j < 3: extra[q] = flat([rest.pop(0)])
        if OPT['atst']:
            m = {1: 1, 4: 2, 8: 7, 12: 8, 20: 9, 28: 3} if OPT['atst'] == 1 else {24: 1, 28: 2, 32: 7, 40: 8, 48: 9, 56: 3}
            if i in m: extra[2] = extra[2] + stamp(m[i])
        if i == OPT['f2t']: extra[0] = [WaitTag('st')] + set_flag(sFL2)
        if i - 2 >= NT - 4 and i - 2 < NT - 1:
            jj = (i - 2) & 3
            for q in range(4): extra[q] = [f'ds_write_b128 v{AR+jj}, {vr(OA + 16*jj + 4*q, 4)} offset:{1024*q}']
        if j == 3 and kt + 1 >= NB - 1: L.append(WaitTag(f'KV{kt+1}'))
        if i + 1 < NT: L.append(qka(i + 1))
        L += extra[0]
        if i > 0: L += cv(i - 1, 3)
        if i < NT: L += ex(i, 0)
        if i + 1 < NT: L.append(qkb(i + 1))
        L += extra[1]
        if i < NT: L += cv(i, 0) + ex(i, 1)
        if i > 0: L.append(pvb(i - 1))
        L += extra[2]
        if i < NT: L += cv(i, 1) + ex(i, 2)
        if i < NT: L.append(pva(i))
        L += extra[3]
        if i < NT: L += cv(i, 2) + ex(i, 3)
    L += stamp(4)
    L += [WaitLgkm0(), 's_barrier']
    own = OA + 48
    for q in (3, 0, 1, 2):
        L += [f'ds_read_b128 {vr(OA + 16*j + 4*q, 4)}, v{AR+3} offset:{LSCR[j] - LSCR[0] + 1024*q}' for j in range(3)]
    for q in (3, 0, 1, 2):
        for j in range(3): L += [f'v_add_f32 v{own+4*q+r}, v{own+4*q+r}, v{OA + 16*j + 4*q + r}' for r in range(4)]
    return L
def attn_finish():
    own = OA + 48
    a, b = 124, 125
    L = ['L_fin:',
         f'v_mov_b32 v{a}, v{own+12}', f'v_mov_b32 v{b}, v{own+12}', f'v_permlane32_swap_b32 v{a}, v{b}',
         f'v_rcp_f32 v{a}, v{b}',
         f'v_cmp_nle_f32 vcc, {f2u(2.0**-40):#x}, v{b}', f'v_cmp_nle_f32 s[{T2}:{T3}], v{b}, s{T0}']
    L += [f'v_mul_f32 v{EB+r}, v{a}, v{own+r}' for r in range(8)]
    L += [f's_or_b64 vcc, vcc, s[{T2}:{T3}]', f's_and_b64 vcc, vcc, s[{T4}:{T5}]', 's_cbranch_vccnz L_slow']
    L += [f'v_cvt_pk_bf16_f32 v{own+i}, v{EB+2*i}, v{EB+2*i+1}' for i in range(4)] + [store4(own, sOO, 0)]
    L += [f'v_mul_f32 v{own+r}, v{a}, v{own+r}' for r in range(8, 16)]
    L += [f'v_cvt_pk_bf16_f32 v{own+4+i}, v{own+8+2*i}, v{own+9+2*i}' for i in range(4)]
    L += [f'v_cndmask_b32 v{own+6}, v{own+6}, 0, s[{sHI}:{sHI+1}]', f'v_cndmask_b32 v{own+7}, v{own+7}, 0, s[{sHI}:{sHI+1}]', store4(own + 4, sOO, 1024)]
    L += stamp(5) + dump_stamps() + ['s_endpgm']
    return L
def attn_slow():
    own = OA + 48; Q = QF + 24; S = SB[0]; K = KF[0]; V = VF[0]; P = PB[0]; M = 232
    L = ['L_slow:',
         f's_lshl_b32 s{T2}, s{sHD}, 17', f's_add_u32 s{sKO}, s{T2}, {WS_QKV + 16*131072}', f's_mov_b32 s{T1}, 0', f'v_mov_b32 v{M}, 0xff800000',
         'L_slow1:', ld4(K, sKO, 0), ld4(K + 4, sKO, 1024), 's_waitcnt vmcnt(0)',
         mfma(S, K, Q, None), mfma(S, K + 4, Q + 4, S)]
    L += [f'v_max3_f32 v{M}, v{S+2*i}, v{S+2*i+1}, v{M}' for i in range(8)]
    L += [f's_add_u32 s{sKO}, s{sKO}, 2048', f's_add_u32 s{T1}, s{T1}, 1', f's_cmp_lt_u32 s{T1}, 64', 's_cbranch_scc1 L_slow1',
          f'v_mov_b32 v{M+1}, v{M}', f'v_mov_b32 v{M+2}, v{M}', f'v_permlane32_swap_b32 v{M+1}, v{M+2}', f'v_max_f32 v{M}, v{M+1}, v{M+2}',
          f's_add_u32 s{sKO}, s{T2}, {WS_QKV + 16*131072}', f's_add_u32 s{sVO}, s{sKO}, {16*131072}', f's_mov_b32 s{T1}, 0']
    L += [f'v_mov_b32 v{own+r}, 0' for r in range(16)]
    L += ['L_slow2:', ld4(K, sKO, 0), ld4(K + 4, sKO, 1024), ld4(V, sVO, 0), ld4(V + 4, sVO, 1024), 's_waitcnt vmcnt(0)',
          mfma(S, K, Q, None), mfma(S, K + 4, Q + 4, S)]
    L += [f'v_sub_f32 v{S+r}, v{S+r}, v{M}' for r in range(16)]
    L += [f'v_exp_f32 v{S+r}, v{S+r}' for r in range(16)]
    L += [f'v_cvt_pk_bf16_f32 v{P+i}, v{S+2*i}, v{S+2*i+1}' for i in range(8)]
    L += [mfma(own, V, P, own), mfma(own, V + 4, P + 4, own),
          f's_add_u32 s{sKO}, s{sKO}, 2048', f's_add_u32 s{sVO}, s{sVO}, 2048', f's_add_u32 s{T1}, s{T1}, 1', f's_cmp_lt_u32 s{T1}, 64', 's_nop 7', 's_cbranch_scc1 L_slow2',
          's_nop 15', f's_mov_b64 s[{T4}:{T5}], 0', 's_branch L_fin']
    return L

HACC = 0
HF = 64; NH = 18
HW = [208, 216]
XR = 224
VD = [VG, VU]
HADDR = dict(VH0=232, VH1=233, AD0=234, AE=240, VXO=241, POL=247, POL2=254)
AD = [[234 + 2*w + u for u in range(2)] for w in range(3)]
PREP = {k: 136 + i for i, k in enumerate(HADDR)}
sKQ, sMB, sNB, sHO, sDO, sK2K, sTH, sKH = 66, 67, 68, 69, 70, 17, 75, 76
sDO2, sHO2, sWOO, sADJ = 12, 13, 15, 16
sOS = 24
def helper_pre0():
    L = []; e = L.append
    a, b = VD
    e(f's_lshr_b32 s{sNB}, s{sIDX}, 2'); e(f's_sub_u32 s{sKQ}, s{sW}, 4'); e(f's_lshl_b32 s{sK2K}, s{sKQ}, 11')
    e(f'v_lshrrev_b32 v{a}, 2, v{LANE}'); e(f'v_and_b32 v{a}, 4, v{a}'); e(f'v_and_b32 v{b}, 7, v{LANE}'); e(f'v_xor_b32 v{a}, v{a}, v{b}')
    e(f'v_lshrrev_b32 v{b}, 3, v{LANE}'); e(f'v_mul_u32_u24 v{b}, 896, v{b}'); e(f'v_lshl_add_u32 v{a}, v{a}, 4, v{b}'); e(f'v_add_u32 v{b}, {8*896}, v{a}')
    e(f's_lshl_b32 s{sWOO}, s{sNB}, 7'); e(f's_mul_i32 s{sDO}, s{sKQ}, {192*896}'); e(f's_add_u32 s{sDO}, s{sDO}, s{sWOO}'); e(f's_add_u32 s{sDO}, s{sDO}, {1024*896}')
    e(f's_mul_i32 s{sDO2}, s{sKQ}, {256*896}'); e(f's_add_u32 s{sDO2}, s{sDO2}, s{sWOO}')
    return L
def helper_pre():
    L = []; e = L.append; P = PREP
    a, b, c = 152, 153, 154
    e(f's_and_b32 s{sTH}, s{sKQ}, 1'); e(f's_lshr_b32 s{sKH}, s{sKQ}, 1')
    e(f's_and_b32 s{T1}, s{sIDX}, 3'); e(f's_lshl2_add_u32 s{sMB}, s{sXCD}, s{T1}')
    e(f'v_bfe_u32 v{a}, v{LANE}, 2, 2'); e(f'v_and_b32 v{b}, 11, v{LANE}'); e(f'v_lshlrev_b32 v{b}, 3, v{b}'); e(f'v_lshl_add_u32 v{b}, v{a}, 7, v{b}')
    e(f'v_bfe_u32 v{a}, v{LANE}, 4, 1'); e(f'v_lshl_add_u32 v{b}, v{a}, 5, v{b}')
    e(f's_lshl_b32 s{T2}, s{sKH}, 6'); e(f's_add_u32 s{T1}, s{sWOO}, s{T2}'); e(f's_or_b32 s{T2}, s{T2}, s{sK2K}')
    e(f'v_lshrrev_b32 v{c}, 5, v{LANE}'); e(f'v_lshl_add_u32 v{b}, v{c}, 9, v{b}'); e(f"v_xor_b32 v{P['AD0']}, s{T2}, v{b}")
    e(f's_mul_i32 s{T2}, s{sKQ}, {112*896}'); e(f's_add_u32 s{sWOO}, s{sWOO}, s{T2}')
    e(f's_lshl_b32 s{sADJ}, s{sTH}, 11')
    e(f's_lshl1_add_u32 s{T2}, s{sMB}, s{sTH}'); e(f's_xor_b32 s{T3}, s{T2}, 1')
    e(f's_mul_i32 s{T4}, s{T2}, {112*1024}'); e(f"v_add_u32 v{P['VH0']}, s{T4}, v{L16}"); e(f's_mul_i32 s{T4}, s{T3}, {112*1024}'); e(f"v_add_u32 v{P['VH1']}, s{T4}, v{L16}")
    e(f's_mul_i32 s{sHO}, s{sKQ}, {12*1024}'); e(f's_add_u32 s{sHO}, s{sHO}, {WS_H + 64*1024}')
    e(f's_lshl_b32 s{sHO2}, s{sKQ}, 14'); e(f's_add_u32 s{sHO2}, s{sHO2}, {WS_H}')
    e(f's_mul_i32 s{T4}, s{T2}, {32*896}'); e(f's_add_u32 s{T4}, s{T4}, s{T1}')
    e(f'v_and_b32 v{b}, 31, v{LANE}'); e(f'v_mul_u32_u24 v{b}, 896, v{b}'); e(f'v_lshl_add_u32 v{b}, v{c}, 4, v{b}'); e(f"v_add_u32 v{P['VXO']}, s{T4}, v{b}")
    e(f's_lshl1_add_u32 s{T2}, s{T2}, s{sKH}'); e(f's_lshl_b32 s{T2}, s{T2}, 14')
    for i in range(4): e(f's_add_u32 s{sOS+i}, s{T2}, {WS_O + 4096*i}')
    e(f"v_add_u32 v{P['AE']}, s{sK2K}, v{L16}")
    e(f'v_and_b32 v{b}, 15, v{LANE}'); e(f's_lshr_b32 s{T2}, s{sMB}, 1'); e(f's_lshl_b32 s{T3}, s{T2}, 11'); e(f's_add_u32 s{T3}, s{T3}, {WS_F3}')
    e(f"v_lshl_add_u32 v{P['POL']}, v{b}, 7, s{T3}")
    e(f'v_and_b32 v{b}, 3, v{LANE}'); e(f'v_lshl_add_u32 v{b}, v{b}, 3, v{a}'); e(f'v_lshl_add_u32 v{b}, v{c}, 2, v{b}')
    e(f's_lshl2_add_u32 s{T2}, s{T2}, s{sKQ}'); e(f's_lshl_b32 s{T2}, s{T2}, 4'); e(f's_and_b32 s{T3}, s{sMB}, 1'); e(f's_add_u32 s{T2}, s{T2}, s{T3}')
    e(f's_lshl_b32 s{T2}, s{T2}, 8'); e(f's_add_u32 s{T2}, s{T2}, {WS_F2}'); e(f"v_lshl_add_u32 v{P['POL2']}, v{b}, 7, s{T2}")
    return L
def wdma(i, s=SD, so=None, tag=None, adv=16):
    tag = tag or f'W{i}'; so = so or (sDO if i < 12 else sDO2)
    return [dma(VD[0], s, so, sK2K, RS[i % 14], tag), dma(VD[1], s, so, sK2K, RS[i % 14] + 1024, tag) + [f's_add_u32 s{so}, s{so}, {adv*896}']]
def helper(nearly):
    L = []; e = L.append; H = HADDR
    VH = [H['VH0'], H['VH1']]
    L += [f'v_mov_b32 v{H[k]}, v{PREP[k]}' for k in H]
    e(f'v_xor_b32 v{AD[0][1]}, 64, v{AD[0][0]}')
    for w in (1, 2):
        for u in range(2): e(f'v_add_u32 v{AD[w][u]}, {RWIN[w]}, v{AD[0][u]}')
    L += stamp(6)
    if OPT['pbst']: L += [Sync()] + dump_stamps() + ['s_branch L_idle']
    e(f's_cmp_ge_u32 s{sIDX}, {0 if OPT["nohelp"] else 28}'); e('s_cbranch_scc1 L_idle')
    e('s_setprio 0')
    win = [f's_waitcnt vmcnt({OPT["hwin"]})']; win2 = [f's_waitcnt vmcnt({OPT["hwin2"]})']
    def hload(i, pace):
        so = sHO if i < 12 else sHO2
        o = [Ins(f'buffer_load_dwordx4 {vr(HF + 8*(i % NH) + 4*mi, 4)}, v{VH[mi]}, {srd(SWS)}, s{so} offen offset:{(i%4)*1024} sc1') for mi in range(2)]
        if i % 4 == 3: o.append(f's_add_u32 s{so}, s{so}, 4096')
        return pace + o[:1] + pace + o[1:]
    def wload(i, pace): return flat([g[:1] + pace + g[1:] for g in wdma(i)])
    wq = list(range(nearly, 14))
    for i in wq[:2]: L += wload(i, [])
    L += [WaitTag('st')] + look(H['POL'], HW[0]) + set_flag(sFL2)
    for i in wq[2:4]: L += wload(i, [])
    L += check_flags(H['POL'], HW[0], 'L_ph') + stamp(3)
    wq = wq[4:]
    for i in range(12):
        L += hload(i, win)
        if wq: L += wload(wq.pop(0), win)
    for k in range(2): L += win + [f"buffer_load_dwordx4 {vr(XR+4*k,4)}, v{H['VXO']}, {srd(SX)}, 0 offen offset:{32*k}"]
    FV = 253; KP = OPT['kpre']
    def trs(dst, slot, extra):
        a = RS[slot]; w = rwin(a)
        return flat([tr2(dst + 4*u, AD[w][u], a - RWIN[w] + extra, 1024) for u in range(2)])
    def wread(i): return [WaitTag(f'W{i}')] + trs(HW[i & 1], i % 14, 0)
    OF = HF + 8 * 10
    def oload(f): return ld4(OF + 4*f, sOS + (f >> 2), (f & 3) * 1024, f'O{f >> 1}')
    ok0 = 28 - OPT['okick']
    okick = split([oload(f) for f in range(16)], 4 * OPT['okick']) if OPT['okick'] else []
    L += wread(0)
    for i in range(28):
        if i == max(KP - 2, 0): L += look(H['POL2'], FV)
        if i == KP:
            L += check_flags(H['POL2'], FV, 'L_pg') + stamp(1)
            for j in range(12, NH + KP): L += hload(j, win)
        if i == OPT['fpoint']: L += ['s_barrier'] + stamp(4)
        pace = win2 if i < OPT['fpoint'] else []
        mm = [mfma(HACC + 32*mi + 16*u, HW[i & 1] + 4*u, HF + 8*(i % NH) + 4*mi, None if i == 0 else HACC + 32*mi + 16*u) for mi in (1, 0) for u in range(2)]
        x = [wread(i + 1) if i < 27 else [], [], [], []]
        d = [[], []]
        if i + 14 < 28: d = wdma(i + 14)
        elif i < 22: d = wdma(i, SWO, sWOO, 'WO', 12 if i & 1 else 16)
        if i + NH < 28 and i >= KP: x[3] = hload(i + NH, pace)
        if i >= ok0:
            for q in range(4): x[q] = x[q] + okick[4 * (i - ok0) + q]
        pd = pace if d[0] else []
        L += [mm[0]] + x[0] + d[0][:1] + [mm[1]] + pd + d[0][1:] + x[1] + d[1][:1] + [mm[2]] + pd + d[1][1:] + x[2] + [mm[3]] + x[3]
    if not OPT['okick']: L += [oload(f) for f in range(16)]
    a, c, d_, a2, a3 = 248, 249, 250, 251, 252
    L += [f"v_xor_b32 v{a}, 2048, v{H['AE']}"] + [f'v_subrev_u32 v{AD[w][u]}, s{sADJ}, v{AD[w][u]}' for w in range(3) for u in range(2)]
    eo = lambda q: RS[8 + (q >> 1)] + 1024 * (q & 1)
    L += [f"ds_write_b128 v{H['AE']}, {vr(HACC + 32 + 4*q, 4)} offset:{eo(q)}" for q in range(8)]
    for k in range(2): L += [f'v_permlane32_swap_b32 v{XR+4*k}, v{XR+4*k+2}', f'v_permlane32_swap_b32 v{XR+4*k+1}, v{XR+4*k+3}']
    for i in range(8):
        L += [f'v_lshlrev_b32 v{c}, 16, v{XR+i}', f'v_and_b32 v{d_}, s{sMASK}, v{XR+i}', f'v_add_f32 v{HACC+2*i}, v{HACC+2*i}, v{c}', f'v_add_f32 v{HACC+2*i+1}, v{HACC+2*i+1}, v{d_}']
    L += stamp(7) + [WaitTag('WO'), WaitLgkm0(), 's_barrier']
    L += [f'ds_read_b128 {vr(HACC + 32 + 4*q, 4)}, v{a} offset:{eo(q)}' for q in range(8)]
    NW = 8; OW = lambda f: HF + 8 * (f % NW)
    def oread(f): return trs(OW(f), 2 * ((f >> 1) & 3) + (f & 1), 2048 * (f >> 3))
    adds = split([f'v_add_f32 v{HACC+r}, v{HACC+r}, v{HACC+32+r}' for r in range(32)], 4)
    L += oread(0)
    for q in range(4): L += adds[q] + oread(q + 1)
    L += [f"v_xor_b32 v{a}, 4096, v{H['AE']}", f"v_add_u32 v{a2}, {RS[13]}, v{H['AE']}", f'v_add_u32 v{a3}, {RS[13]}, v{a}', f's_mov_b32 s{T5}, 0']
    retry = []
    def check(h):
        r = OF + 8*h
        o = [f'L_oc{h}:', f's_waitcnt vmcnt({2*(7-h)})', f'v_max_u32 v{c}, v{r}, v{r+1}'] + [f'v_max3_u32 v{c}, v{r+k}, v{r+k+1}, v{c}' for k in (2, 4, 6)]
        o += [f'v_cmp_eq_u32 vcc, -1, v{c}', f's_cbranch_vccnz L_or{h}', f'L_ok{h}:']
        retry.extend([f'L_or{h}:', f's_add_u32 s{T5}, s{T5}, 1', f's_cmp_ge_u32 s{T5}, 50000', f's_cbranch_scc1 L_ok{h}'] +
                     [oload(f) for f in range(2*h, 16)] + [f's_branch L_oc{h}'])
        return o
    L += check(0) + stamp(5)
    m1 = lambda f: mfma(HACC + 16, OW(f) + 4, OF + 4*f, HACC + 16)
    m0 = lambda f: mfma(HACC, OW(f), OF + 4*f, HACC)
    wr2 = [f"ds_write_b128 v{H['AE'] if q < 2 else a2}, {vr(HACC + 16 + 4*q, 4)} offset:{(RS[12] if q < 2 else 0) + 1024*(q & 1)}" for q in range(4)]
    for f in range(0, 14, 2):
        L += [m1(f)] + (oread(f + 5) if f + 5 < 16 else []) + [m0(f)] + check(f // 2 + 1) + [m1(f + 1)] + (oread(f + 6) if f + 6 < 16 else []) + [m0(f + 1)]
    L += [m1(14), m1(15), m0(14), m0(15)] + wr2
    L += [WaitLgkm0(), 's_barrier']
    L += [f'ds_read_b128 {vr(HACC + 16 + 4*q, 4)}, v{a if q < 2 else a3} offset:{(RS[12] if q < 2 else 0) + 1024*(q & 1)}' for q in range(4)]
    for k in range(2):
        L += [f'v_add_f32 v{HACC+r}, v{HACC+r}, v{HACC+16+r}' for r in range(8*k, 8*k + 8)]
        L += [f'v_cvt_pk_bf16_f32 v{HACC+32+4*k+i}, v{HACC+8*k+2*i}, v{HACC+8*k+2*i+1}' for i in range(4)]
        L += [f'v_permlane32_swap_b32 v{HACC+32+4*k}, v{HACC+34+4*k}', f'v_permlane32_swap_b32 v{HACC+33+4*k}, v{HACC+35+4*k}']
        e(f"buffer_store_dwordx4 {vr(HACC+32+4*k,4)}, v{H['VXO']}, {srd(SOUT)}, 0 offen offset:{32*k}")
    if OPT['stamps']: L += [f's_mov_b32 s{sST+9}, s{T5}'] + stamp(8) + dump_stamps()
    e('s_endpgm')
    return L, retry
def idle():
    a, b = 200, 204
    L = ['L_idle:'] + [f'v_lshlrev_b32 v{a}, 7, v{LANE}'] + [f'v_add_u32 v{a+i}, {WS_F1 + 8192*i}, v{a}' for i in (3, 2, 1, 0)]
    L += ['s_waitcnt vmcnt(0)'] + set_flag(sFL2)
    L += ['s_cmp_lg_u32 s2, 255', 's_cbranch_scc1 L_end', f's_cmp_lg_u32 s{sW}, 4', 's_cbranch_scc1 L_end', f's_mov_b32 s{T5}, 0']
    ld = [f'buffer_load_dword v{b+i}, v{a+i}, {srd(SWS)}, 0 offen sc1' for i in range(4)]
    L += ld + ['L_idle1:', 's_waitcnt vmcnt(0)']
    L += [f'v_xor_b32 v{b+i}, s{sTAG}, v{b+i}' for i in range(4)] + [f'v_or3_b32 v{b}, v{b}, v{b+1}, v{b+2}', f'v_or_b32 v{b}, v{b}, v{b+3}',
          f'v_cmp_ne_u32 vcc, 0, v{b}', 's_cbranch_vccz L_idle2', f's_add_u32 s{T5}, s{T5}, 1', f's_cmp_lt_u32 s{T5}, 100000', 's_cbranch_scc0 L_idle2']
    L += ld + ['s_branch L_idle1', 'L_idle2:',
          f'v_mov_b32 v{a}, s{sTAG}', 's_mov_b64 exec, 1', f'buffer_store_dword v{a}, v{L16}, {srd(SWS)}, 0 offen sc1', 'L_end:', 's_endpgm']
    return L

def build():
    parts = []
    def sub(state, L):
        t = state.clone_state(); t.feed_all(L); parts.append(t); return t
    tags = lambda t: [x[0] for x in t.vm]
    t0 = Tracker(); t0.feed_all(setup() + [f's_cmp_ge_u32 s{sW}, 4', 's_cbranch_scc1 L_passA1']); parts.append(t0)
    def heads(tr, r):
        tr.feed_all(['s_setprio 0', f's_cmp_ge_u32 s{sKIND}, 2', f's_cbranch_scc1 L_epiV{r}'])
        t1 = sub(tr, epi_T(ACCA[0], 0) + [f's_cmp_eq_u32 s{sKIND}, 0', f's_cbranch_scc0 L_epi2{r}'])
        t2 = sub(t1, epi_T(ACCA[1], 1) + epi_T(ACCA[2], 2) + [f's_branch L_epi2{r}'])
        v, st = epi_V(ACCA[0])
        tv = sub(tr, [f'L_epiV{r}:'] + v_addr() + v + st + ['s_nop 0'])
        assert tags(t1) == tags(tv) and not tv.lg and t1.lg == t2.lg
        k = t1.clone_state(); parts.append(k)
        k.feed_all([f'L_epi2{r}:'] + stamp(7) + gu_block(f'L_gu{r}') + ['s_setprio 1'])
        return k
    def endA(): return stamp(2) + ([Sync()] + dump_stamps() + ['s_endpgm'] if OPT['chunkst'] else []) + epi_common()
    def flag1(FK, r):
        return {2*FK: [WaitTag('st'), 's_barrier'] + ([] if OPT['pbst'] else stamp(8)) + (wg_flag(sFL, 'L_f1') if r == 'h' else []), 2*FK + 2: gu_store(f'L_gus{r}')}
    PK, LK, SH = OPT['pollk'], OPT['lookk'], OPT['shift']
    b56 = {OPT['b56'] + 2*i: g for i, g in enumerate(dma_B(5) + dma_B(6))}
    ta = sub(t0, pass_A(0) + endA())
    k = heads(ta, 'a')
    ex = dict(b56); ex.update(flag1(OPT['f1k'], 'a'))
    ex[2*LK + 1] = look(PA, PV_); ex[2*PK] = check_flags(PA, PV_, 'L_pq') + stamp(9)
    fl = first_loads(); NP = OPT['npre']
    for q, part in enumerate(split(fl[:NP], 2 * (28 - PK) - 1)): ex[2*PK + 1 + q] = part
    NE2 = NP + OPT['nepi']
    eb, hst = epi_B(fl[NP:NE2], False)
    A = pass_B(0, 28, attn_pre(), 2*LK - 10, ex, 10) + eb + stamp(6) + ['s_setprio 2']
    if OPT['pbst']: A += [Sync()] + dump_stamps() + ['s_endpgm']
    k.feed_all(A + attn_main(fl[NE2:] + hst) + attn_finish())
    ts = Tracker(); ts.feed_all(attn_slow()); parts.append(ts)
    b56 = {OPT['b56'] + 2*i: g for i, g in enumerate(dma_B(5) + dma_B(6))}
    assert max(b56) < 2*SH <= 20
    th = sub(t0, ['L_passA1:'] + pass_A(1) + endA() + ['s_setprio 1'] + pass_B(0, SH, extra=b56))
    k = heads(th, 'h')
    ex = flag1(OPT['f1k'], 'h')
    ex[53] = [WaitTag('hm')]; ex[55] = wg_flag(sFL3, 'L_f3')
    free = [sl for sl in range(2*SH, 56) if sl not in ex]
    NE = OPT['nearly']; pos = 0
    for i in range(NE):
        lo = 2*SH if i < 3 else 21 if i < 9 else 37
        for g in wdma(i):
            while free[pos] < lo: pos += 1
            ex[free[pos]] = g; pos += 1
    hl, retry = helper(NE)
    k.feed_all(helper_pre0() + pass_B(SH, 28, helper_pre(), 24, ex, 24 - 2*SH) + epi_B() + hl)
    tq = Tracker()
    for x in retry:
        tq.vm = []; tq.feed(x)
    parts.append(tq)
    ti = Tracker(); ti.feed_all(idle()); parts.append(ti)
    body = '\n'.join(p.text() for p in parts)
    for p in parts:
        for n, t in p.log: print(f'nop {n}: {t}', file=sys.stderr)
    print('total nop states', sum(p.nops for p in parts), file=sys.stderr)
    hdr = f'''; fused layernorm + (MHA -> Wo) + (ReGLU FFN) + residual, one persistent launch (generated by gen/gen2.py)
; @launch grid=(256,1,1) block=(512,1,1) lds=163840
.amdgcn_target "amdgcn-amd-amdhsa--gfx950"
.text
.globl {NAME}_kernel
.p2align 8
.type {NAME}_kernel,@function
{NAME}_kernel:
'''
    ftr = f'''
.section .rodata,"a"
.p2align 6
.amdhsa_kernel {NAME}_kernel
  .amdhsa_next_free_vgpr 256
  .amdhsa_next_free_sgpr 102
  .amdhsa_accum_offset 256
  .amdhsa_group_segment_fixed_size 0
  .amdhsa_kernarg_size 80
  .amdhsa_user_sgpr_count 2
  .amdhsa_user_sgpr_kernarg_segment_ptr 1
  .amdhsa_system_sgpr_workgroup_id_x 1
.end_amdhsa_kernel
'''
    return hdr + body + ftr

if __name__ == '__main__':
    open(sys.argv[1], 'w').write(build())
```
